```python
import torch

def _softmax(x, axis=-1):
    return torch.softmax(x, dim=axis)

def _gelu(x):
    return torch.nn.functional.gelu(x, approximate='tanh')

def _silu(x):
    return torch.nn.functional.silu(x)

def _sigmoid(x):
    return torch.sigmoid(x)

def _layernorm(x, axis=-1, eps=1e-05):
    m = x.mean(dim=axis, keepdim=True)
    v = x.var(dim=axis, keepdim=True, unbiased=False)
    return (x - m) / torch.sqrt(v + eps)

def _scatter_add(tgt, idx, src, axis=0):
    return tgt.clone().index_add_(axis, idx, src)

def _segment_sum(src, seg, n):
    out = torch.zeros((n,) + src.shape[1:], dtype=src.dtype)
    return out.index_add_(0, seg, src)

def _pad(x, pw):
    flat = tuple((v for pair in reversed(pw) for v in pair))
    return torch.nn.functional.pad(x, flat)
kernel_name = 'concat_heads__memory_aug_recurrent_mem_tr__sliding_local_dilated__prompt'

def setup_inputs():

    _w = lambda a: (lambda t: t.to(torch.bfloat16) if t.is_floating_point() else t)(torch.as_tensor(a))

    def _A_setup():
        B, S, Dm = (1, 2048, 640)
        H, Dh = (32, 192)
        M, seg = (8, 32)
        seg = min(seg, S)
        S = S // seg * seg
        return {'x': _w((lambda *s: torch.randn(*s, dtype=torch.bfloat16) * 0.05)(B, S, Dm)), 'mem0': _w((lambda *s: torch.randn(*s, dtype=torch.bfloat16) * 1.6)(B, M, Dm)), 'Wq': _w((lambda *s: torch.randn(*s, dtype=torch.bfloat16) * 0.8)(Dm, H, Dh) * Dm ** (-0.5)), 'Wk': _w((lambda *s: torch.randn(*s, dtype=torch.bfloat16) * 0.8)(Dm, H, Dh) * Dm ** (-0.5)), 'Wv': _w((lambda *s: torch.randn(*s, dtype=torch.bfloat16) * 1.6)(Dm, H, Dh) * Dm ** (-0.5)), 'Wo': _w((lambda *s: torch.randn(*s, dtype=torch.bfloat16) * 1.6)(H, Dh, Dm) * (H * Dh) ** (-0.5)), 'seg_len': seg}
    _A_in = _A_setup()

    def _B_setup():
        B, S, D = (1, 2048, 640)
        return {'x': _w((lambda *s: torch.randn(*s, dtype=torch.bfloat16) * 0.2)(B, S, D)), 'wqkv': _w((lambda *s: torch.randn(*s, dtype=torch.bfloat16) * 0.2)(D, 3 * D)), 'wo': _w((lambda *s: torch.randn(*s, dtype=torch.bfloat16) * 0.05)(D, D))}
    _B_in = _B_setup()
    return {'A_x': _A_in['x'], 'A_mem0': _A_in['mem0'], 'A_Wq': _A_in['Wq'], 'A_Wk': _A_in['Wk'], 'A_Wv': _A_in['Wv'], 'A_Wo': _A_in['Wo'], 'A_seg_len': _A_in['seg_len'], 'B_x': _B_in['x'], 'B_wqkv': _B_in['wqkv'], 'B_wo': _B_in['wo']}

def reference(A_x, A_mem0, A_Wq, A_Wk, A_Wv, A_Wo, A_seg_len, B_x, B_wqkv, B_wo):

    def _A_ref(x, mem0, Wq, Wk, Wv, Wo, seg_len):
        B, S, Dm = x.shape
        H, Dh = (Wq.shape[1], Wq.shape[2])
        M = mem0.shape[1]
        scale = Dh ** (-0.5)
        n_seg = S // seg_len
        L = M + seg_len
        idx = torch.arange(L)
        mask = (idx[:, None] < M) | (idx[:, None] >= idx[None, :])
        mem = mem0
        outs = []
        for s in range(n_seg):
            xs = x[:, s * seg_len:(s + 1) * seg_len, :].clone()
            h = torch.concatenate([mem, xs], axis=1)
            q = torch.einsum('btd,dhe->bhte', h, Wq)
            k = torch.einsum('btd,dhe->bhte', h, Wk)
            v = torch.einsum('btd,dhe->bhte', h, Wv)
            scores = torch.einsum('bhqe,bhke->bhqk', q, k) * scale
            scores = torch.where(mask[None, None], scores, -1000000000.0)
            p = _softmax(scores, axis=-1)
            o = torch.einsum('bhqk,bhke->bhqe', p, v)
            o = torch.einsum('bhte,hed->btd', o, Wo)
            mem = o[:, :M, :].clone()
            outs.append(o[:, M:, :])
        return torch.concatenate(outs, axis=1)

    def _B_ref(x, wqkv, wo):
        B, S, D = x.shape
        H = 32
        Dh = D // H
        W, dil = (8, 2)
        qkv = (lambda x, *d: x.permute(*d))((x @ wqkv).reshape(B, S, 3, H, Dh), 2, 0, 3, 1, 4)
        q, k, v = (qkv[0], qkv[1], qkv[2])
        scale = Dh ** (-0.5)
        pos = torch.arange(S)
        off = torch.arange(W) * dil
        idx = pos[:, None] - off[None, :]
        mask = idx >= 0
        idx_c = torch.where(mask, idx, 0).reshape(-1)
        kg = k[:, :, idx_c, :].reshape(B, H, S, W, Dh)
        vg = v[:, :, idx_c, :].reshape(B, H, S, W, Dh)
        logits = torch.einsum('bhsd,bhswd->bhsw', q, kg) * scale
        logits = torch.where(mask[None, None, :, :], logits, -1000000000.0)
        attn = _softmax(logits, axis=-1)
        o = torch.einsum('bhsw,bhswd->bhsd', attn, vg)
        return (lambda x, *d: x.permute(*d))(o, 0, 2, 1, 3).reshape(B, S, D) @ wo
    a = _A_ref(A_x, A_mem0, A_Wq, A_Wk, A_Wv, A_Wo, A_seg_len)
    b = _B_ref(B_x, B_wqkv, B_wo)
    return torch.concatenate([a, b], axis=-1)
```

```python
import re

_REG = re.compile(r'^(-?)(?:abs\()?([vas])(?:\[(\d+):(\d+)\]|(\d+))\)?$')
TRANS = ('v_exp_f32', 'v_log_f32', 'v_rcp_f32', 'v_rsq_f32', 'v_sqrt_f32', 'v_sin_f32', 'v_cos_f32')


def regs_of(op):
    op = op.strip()
    if op == 'vcc':
        return {('s', 106), ('s', 107)}
    if op == 'vcc_lo':
        return {('s', 106)}
    if op == 'vcc_hi':
        return {('s', 107)}
    if op == 'm0':
        return {('s', 124)}
    if op in ('exec', 'exec_lo', 'exec_hi'):
        return {('s', 126), ('s', 127)}
    m = _REG.match(op)
    if not m:
        return set()
    k = m.group(2)
    if m.group(5) is not None:
        lo = hi = int(m.group(5))
    else:
        lo, hi = int(m.group(3)), int(m.group(4))
    if k == 'a':
        return {('v', 256 + i) for i in range(lo, hi + 1)}
    return {(k, i) for i in range(lo, hi + 1)}


class Ins:
    def __init__(self, text):
        self.text = text
        parts = text.split(None, 1)
        self.op = op = parts[0]
        rest = parts[1] if len(parts) > 1 else ''
        raw = [x.strip() for x in rest.split(',')] if rest else []
        self.mods = ''
        if raw:
            t = raw[-1].split(None, 1)
            raw[-1] = t[0]
            self.mods = t[1] if len(t) > 1 else ''
        self.ops = raw
        R = [regs_of(x) for x in raw]
        U = lambda l: set().union(*l) if l else set()
        self.kind = 'other'
        self.rd, self.wr = set(), set()
        self.srcC = set()
        self.srcAB = set()
        self.dpp = 'row_' in self.mods or 'quad_perm' in self.mods
        self.ws = 1
        self.passes = 0
        self.stdata = set()
        if op == 's_nop':
            self.kind = 'nop'
            self.ws = int(raw[0], 0) + 1
        elif op.startswith('v_mfma') or op.startswith('v_smfmac'):
            self.kind = 'mfma'
            self.passes = 8 if '32x32' in op else 4
            self.wr = R[0]
            if op.startswith('v_smfmac'):
                self.srcC = R[0]
                self.srcAB = U(R[1:4])
            else:
                self.srcC = R[3]
                self.srcAB = U(R[1:3])
            self.rd = self.srcC | self.srcAB
        elif op.startswith('v_'):
            self.kind = 'valu'
            if op == 'v_nop':
                pass
            elif op.startswith('v_permlane'):
                self.wr = U(R)
                self.rd = U(R)
            elif op.startswith('v_add_co') or op.startswith('v_sub_co') or op.startswith('v_addc_co'):
                self.wr = R[0] | R[1]
                self.rd = U(R[2:])
            else:
                self.wr = R[0]
                self.rd = U(R[1:])
                if op.startswith('v_fmac') or op.startswith('v_dot2c') or self.dpp or op.startswith('v_writelane'):
                    self.rd |= R[0]
        elif op.startswith('ds_'):
            self.kind = 'ds'
            if op.startswith('ds_read') or '_rtn' in op or op.startswith('ds_bpermute') or op.startswith('ds_swizzle'):
                self.wr = R[0]
                self.rd = U(R[1:])
            else:
                self.rd = U(R)
        elif op.startswith('buffer_') or op.startswith('global_'):
            self.kind = 'vmem'
            mods = self.mods.split()
            if 'lds' in mods:
                self.rd = U(R) | {('s', 124)}
                self.ldsdma = True
            elif '_load' in op:
                self.wr = R[0]
                self.rd = U(R[1:])
            elif '_store' in op:
                self.rd = U(R)
                if op.endswith('x3') or op.endswith('x4'):
                    self.stdata = R[0] if op.startswith('buffer_') else R[1]
            elif '_atomic' in op:
                self.rd = U(R)
                if 'sc0' in mods:
                    self.wr = R[0]
        elif op.startswith('s_'):
            self.kind = 'salu'
            if op.startswith(('s_cbranch', 's_branch')):
                self.kind = 'branch'
            elif op.startswith(('s_cmp', 's_bitcmp', 's_waitcnt', 's_barrier', 's_endpgm', 's_setprio', 's_sleep')):
                self.rd = U(R)
            elif op.startswith(('s_load', 's_memtime', 's_memrealtime')):
                self.kind = 'smem'
                self.wr = R[0]
                self.rd = U(R[1:])
            else:
                self.wr = R[0]
                self.rd = U(R[1:])
        self.isdot = op.startswith('v_dot')
        self.istrans = op.startswith(TRANS)


def vonly(s):
    return {r for r in s if r[0] == 'v'}


def sonly(s):
    return {r for r in s if r[0] == 's'}


def need(p, c):
    n = 0
    if p.kind == 'valu':
        pv, ps = vonly(p.wr), sonly(p.wr)
        if c.kind == 'mfma' and pv & c.rd:
            n = max(n, 3 if p.isdot else 2)
        if c.kind == 'valu':
            if pv & c.rd:
                if c.dpp or c.op.startswith('v_permlane'):
                    n = max(n, 2)
                if c.op.startswith(('v_readlane', 'v_readfirstlane')):
                    n = max(n, 1)
                if p.istrans and not c.istrans:
                    n = max(n, 1)
            if p.isdot and pv & (c.rd | c.wr):
                same = c.op.replace('_dpp', '') == p.op.replace('_dpp', '')
                if same:
                    ab = set().union(*[regs_of(x) for x in c.ops[1:3]])
                    if pv & ab:
                        n = max(n, 3)
                else:
                    n = max(n, 3)
            if ps & c.rd:
                n = max(n, 4 if c.op.startswith(('v_readlane', 'v_writelane')) else 2)
        if c.kind in ('vmem', 'ds') and p.isdot and pv & c.rd:
            n = max(n, 3)
        if c.kind in ('vmem', 'ds') and p.istrans and pv & c.rd:
            n = max(n, 1)
        if c.kind == 'vmem' and ps & c.rd:
            n = max(n, 5)
        if c.kind in ('salu', 'smem') and ps & c.rd:
            n = max(n, 1)
    if p.kind == 'mfma':
        big = p.passes == 8
        if c.kind == 'mfma':
            if p.wr & c.srcAB:
                n = max(n, 12 if big else 8)
            if p.wr & c.srcC and not (p.wr == c.srcC and p.op == c.op):
                n = max(n, 10 if big else 6)
            if p.wr & c.wr and not p.wr & c.srcC and p.wr != c.wr:
                n = max(n, 10 if big else 6)
        elif c.kind in ('valu', 'vmem', 'ds'):
            if p.wr & (c.rd | c.wr):
                n = max(n, 12 if big else 8)
            if c.kind == 'valu' and p.srcC & c.wr:
                n = max(n, 7 if big else 3)
    if p.kind == 'vmem' and p.stdata & c.wr:
        n = max(n, 2 if c.kind in ('valu', 'mfma') else 1)
    if p.kind == 'salu' and ('s', 124) in p.wr and c.kind == 'vmem' and ('s', 124) in c.rd:
        n = max(n, 1)
    return n


class Em:
    def __init__(self):
        self.items = []
        self.vmq = []
        self.nlab = 0
        self.padded = 0

    def _hist(self, upto=None):
        out = []
        i = (len(self.items) if upto is None else upto) - 1
        while i >= 0 and len(out) < 14:
            it = self.items[i]
            if isinstance(it, Ins):
                if it.op in ('s_branch', 's_endpgm') and upto is None:
                    break
                out.append(it)
            i -= 1
        return out

    def __call__(self, text, tag=None):
        for line in text.strip().split('\n'):
            line = line.split(';')[0].strip()
            if not line:
                continue
            c = Ins(line)
            gap, pad = 0, 0
            for p in self._hist():
                pad = max(pad, need(p, c) - gap)
                gap += p.ws
            if pad > 0:
                self.items.append(Ins('s_nop %d' % (pad - 1)))
                self.padded += pad
            self.items.append(c)
            if c.kind == 'vmem':
                self.vmq.append(tag)

    def label(self, name):
        self.items.append(('label', name))

    def newlabel(self, stem='L'):
        self.nlab += 1
        return '%s_%d' % (stem, self.nlab)

    def raw(self, text):
        self.items.append(('raw', text))

    def comment(self, text):
        self.items.append(('raw', '; ' + text))

    def vmcount(self, tag):
        for k, t in enumerate(reversed(self.vmq)):
            if t == tag:
                return k
        raise KeyError(tag)

    def wait_vm(self, tag, extra=''):
        n = self.vmcount(tag)
        assert n < 64, (tag, n)
        self('s_waitcnt vmcnt(%d) %s' % (n, extra))

    def check_branches(self):
        pos = {it[1]: i for i, it in enumerate(self.items) if not isinstance(it, Ins) and it[0] == 'label'}
        bad = []
        for i, it in enumerate(self.items):
            if isinstance(it, Ins) and it.kind == 'branch':
                hist = self._hist(i + 1)
                h2 = [hist[0]]
                for p in hist[1:]:
                    if p.op in ('s_branch', 's_endpgm'):
                        break
                    h2.append(p)
                j = pos[it.ops[0]]
                after = 0
                while j < len(self.items) and after < 14:
                    c = self.items[j]
                    j += 1
                    if not isinstance(c, Ins):
                        continue
                    gap = after
                    for p in h2:
                        if need(p, c) > gap:
                            bad.append((p.text, it.text, c.text))
                        gap += p.ws
                    after += c.ws
                    if c.op in ('s_branch', 's_endpgm'):
                        break
        return bad

    def text(self):
        out = []
        for it in self.items:
            if isinstance(it, Ins):
                out.append('    ' + it.text)
            elif it[0] == 'label':
                out.append(it[1] + ':')
            else:
                out.append(it[1])
        return '\n'.join(out) + '\n'

    def ninstr(self):
        return sum(isinstance(x, Ins) for x in self.items)


def vr(lo, n=1):
    k = 'v'
    if lo >= 256:
        k, lo = 'a', lo - 256
        assert lo + n <= 256
    else:
        assert lo + n <= 256, (lo, n)
    return '%s%d' % (k, lo) if n == 1 else '%s[%d:%d]' % (k, lo, lo + n - 1)


def sr(lo, n=1):
    return 's%d' % lo if n == 1 else 's[%d:%d]' % (lo, lo + n - 1)
```

```python
import math
import struct
from common import *

sAI = 60
sH, sS, sSEG, sX, sT, sC, sNEED = 61, 62, 63, 64, 66, 68, 69
sV, sK, sMK, sMASK = 70, 73, 76, 84
A16, L4, FLA, CFA, AFA, KW, KTR, NEG, TMP, L4S = 1, 2, 3, 4, 5, 6, 7, 8, 10, 9
QR, KR = 256, 304
VO = 20
KD, KMF = 96, 108
SX, SM = 132, 144
PA, PB = 152, 156
AO, OUT = 164, 196


def f2u(x):
    return struct.unpack('<I', struct.pack('<f', x))[0]


def cross(e, op, a, b):
    e(f'''v_mov_b32 v{b}, v{a}
          v_permlane16_swap_b32 v{a}, v{b}
          {op} v{a}, v{a}, v{b}
          v_mov_b32 v{b}, v{a}
          v_permlane32_swap_b32 v{a}, v{b}
          {op} v{a}, v{a}, v{b}''')


def attn(e, o):
    e.comment('---- attention of the token rows')
    e.label('L_attn')
    scale = 192 ** -0.5
    e(f'''s_lshl_b32 s{sT}, s{sAI}, 2
          s_add_u32 s{sT}, s{sT}, s{S_W}
          s_lshr_b32 s{sH}, s{sT}, 1
          s_and_b32 s{sS}, s{sT}, 1
          s_lshl_b32 s6, s{sS}, 5
          s_add_u32 s6, s6, s{sH}
          s_lshl_b32 s6, s6, 2
          s_add_u32 s6, s6, {hex(AFLAGS)}
          v_mov_b32 v{AFA}, s6
          v_mov_b32 v{TMP}, 0
          s_mov_b64 exec, 1
          buffer_store_dword v{TMP}, v{AFA}, {WS}, 0 offen sc1
          s_mov_b64 exec, -1
          s_waitcnt vmcnt(0)
          s_barrier''')
    arrive(e, TMP, TMP + 1)
    e(f'''s_mul_i32 s6, s{sH}, {HS}
          v_lshl_add_u32 v{A16}, v0, 4, s6
          v_lshlrev_b32 v{L4}, 2, v0
          v_min_u32 v{TMP}, 8, v0
          s_lshl_b32 s6, s{sH}, 7
          s_add_u32 s6, s6, {hex(FLAGS)}
          v_lshl_add_u32 v{FLA}, v{TMP}, 2, s6
          v_and_b32 v{TMP}, 15, v0
          v_lshrrev_b32 v{TMP+1}, 4, v0
          s_lshl_b32 s6, s{S_W}, 13
          v_lshlrev_b32 v{KW}, 5, v{TMP}
          v_lshl_add_u32 v{KW}, v{TMP+1}, 3, v{KW}
          v_add_u32 v{KW}, s6, v{KW}
          v_lshlrev_b32 v{KTR}, 3, v0
          v_add_u32 v{KTR}, s6, v{KTR}
          v_lshlrev_b32 v{TMP+1}, 2, v{TMP+1}
          v_mov_b32 v{NEG}, {hex(f2u(-1e9 / scale))}
          s_mov_b32 s{sC}, {hex(f2u(scale * math.log2(math.e)))}
          s_mul_i32 s{sSEG}, s{sS}, {SEG}''')
    for r in range(4):
        e(f'''v_add_u32 v{TMP+2}, {r}, v{TMP+1}
              v_cmp_le_u32 s[{sMK+2*r}:{sMK+2*r+1}], v{TMP+2}, v{TMP}''')
    for r in [VO + 6*t + 1 for t in range(12)] + [VO + 72, VO + 73, PA + 1, PB + 1, PB + 6, PB + 7]:
        e(f'v_mov_b32 v{r}, 0')
    start_wait(e, TMP, sMASK)
    if 'pol' in o:
        m = 0x55555555 if o['pol'] else 0xaaaaaaaa
        e(f's_mov_b32 s{sMASK}, {hex(m)}\ns_mov_b32 s{sMASK+1}, {hex(m)}')
    xb_base(e, sX, sH, sMASK, sT)
    for j in range(3):
        xb_group(e, sV + j, sX, sH, j, 2, sT)
        xb_group(e, sK + j, sX, sH, j, 3, sT)
    for j in range(3):
        xb_group(e, 6, sX, sH, 3, j, sT)
        if j == 0:
            e(f'v_mov_b32 v{CFA}, s6')
        else:
            e(f'v_writelane_b32 v{CFA}, s6, {j}')
    e(f'''s_lshl_b32 s6, s{sS}, 15
          v_add_u32 v{L4S}, s6, v{L4}''')

    def wait_proj():
        l, ok = e.newlabel('L_apw'), e.newlabel('L_apo')
        e.label(l)
        e(f'''buffer_load_dword v{TMP}, v{FLA}, {WS}, 0 offen sc1
              s_waitcnt vmcnt(0)
              v_cmp_ge_u32 vcc, s{sS}, v{TMP}
              s_cbranch_vccz {ok}
              s_sleep 8''')
        guard(e, l)
        e.label(ok)

    def loads():
        for base, reg in ((KF, lambda i: KR + 4*i), (QF, lambda i: QR + 4*i), (VF, lambda i: VO + 6*i + 2)):
            for i in range(12):
                if i % 4 == 0:
                    e(f's_add_u32 s{sT}, s{sSEG}, {hex(base + 1024*i)}')
                e(f'buffer_load_dwordx4 {vr(reg(i),4)}, v{A16}, {WS}, s{sT} offen offset:{1024*(i % 4)} sc1')
    wait_proj()
    loads()
    top, cw, cok, fin = e.newlabel('L_at'), e.newlabel('L_acw'), e.newlabel('L_aco'), e.newlabel('L_afin')
    e.label(top)
    e('s_waitcnt vmcnt(12)')
    for k in range(6):
        for i, (kt, tt) in enumerate(((0, 0), (0, 1), (1, 1))):
            e(f'v_mfma_f32_16x16x32_bf16 {vr(SX+4*i,4)}, {vr(KR+8*k+4*kt,4)}, {vr(QR+8*k+4*tt,4)}, {vr(SX+4*i,4) if k else 0}')
    e.label(cw)
    e(f'''v_mov_b32 v{TMP}, 0
          s_mov_b64 exec, 7
          buffer_atomic_or v{TMP}, v{CFA}, {WS}, 0 offen sc0
          s_waitcnt vmcnt(0)
          v_cmp_ge_u32 vcc, s{sS}, v{TMP}
          s_mov_b64 exec, -1
          s_cbranch_vccz {cok}
          s_sleep 2''')
    guard(e, cw)
    e.label(cok)
    for t in range(12):
        e(f'buffer_load_dword v{KD+t}, v{L4S}, {WS}, s{sK + (t >> 2)} offen offset:{256*(t & 3)} sc1')
    for t in range(12):
        e(f'buffer_load_dword v{VO+6*t}, v{L4S}, {WS}, s{sV + (t >> 2)} offen offset:{256*(t & 3)} sc1')
    for r in range(4):
        e(f'''v_cndmask_b32 v{SX+r}, v{NEG}, v{SX+r}, s[{sMK+2*r}:{sMK+2*r+1}]
              v_cndmask_b32 v{SX+8+r}, v{NEG}, v{SX+8+r}, s[{sMK+2*r}:{sMK+2*r+1}]''')
    e('s_waitcnt vmcnt(12)')
    for t in range(12):
        e(f'ds_write_b32 v{KW}, v{KD+t} offset:{512*t}')
    for t in range(12):
        e(f'ds_read_b64_tr_b16 {vr(KMF+2*t,2)}, v{KTR} offset:{512*t}')
    for k in range(6):
        e(f's_waitcnt lgkmcnt({10-2*k})')
        for tt in range(2):
            e(f'v_mfma_f32_16x16x32_bf16 {vr(SM+4*tt,4)}, {vr(KMF+4*k,4)}, {vr(QR+8*k+4*tt,4)}, {vr(SM+4*tt,4) if k else 0}')
    vals = [[SX, SX+1, SX+2, SX+3, SM, SM+1], list(range(SX+4, SX+12)) + [SM+4, SM+5]]
    for tt in range(2):
        v, m, b = vals[tt], TMP + 2*tt, TMP + 2*tt + 1
        e(f'v_max_f32 v{m}, v{v[0]}, v{v[1]}')
        for i in range(2, len(v), 2):
            e(f'v_max3_f32 v{m}, v{m}, v{v[i]}, v{v[i+1]}')
        cross(e, 'v_max_f32', m, b)
        e(f'v_mul_f32 v{m}, s{sC}, v{m}')
        for x in v:
            e(f'v_fma_f32 v{x}, v{x}, s{sC}, -v{m}')
        for x in v:
            e(f'v_exp_f32 v{x}, v{x}')
        e(f'v_add_f32 v{m}, v{v[0]}, v{v[1]}')
        for x in v[2:]:
            e(f'v_add_f32 v{m}, v{m}, v{x}')
        cross(e, 'v_add_f32', m, b)
        e(f'v_rcp_f32 v{m}, v{m}')
        for x in v:
            e(f'v_mul_f32 v{x}, v{x}, v{m}')
        p = PB if tt else PA
        e(f'v_cvt_pk_bf16_f32 v{p}, v{v[-2]}, v{v[-1]}')
        for i in range(0, len(v) - 2, 2):
            e(f'v_cvt_pk_bf16_f32 v{p+2+i//2}, v{v[i]}, v{v[i+1]}')
    e('s_waitcnt vmcnt(0)')

    def pv(k):
        for h in range(2):
            a, acc = VO + 6*(2*k + h), AO + 16*(k & 1) + 4*h
            e(f'''v_mfma_f32_16x16x32_bf16 {vr(acc,4)}, {vr(a,4)}, {vr(PA,4)}, 0
                  v_mfma_f32_16x16x32_bf16 {vr(acc+8,4)}, {vr(a,4)}, {vr(PB,4)}, 0
                  v_mfma_f32_16x16x32_bf16 {vr(acc+8,4)}, {vr(a+4,4)}, {vr(PB+4,4)}, {vr(acc+8,4)}''')

    def put(k):
        if k % 2 == 0:
            e(f's_add_u32 s{sT}, s{sSEG}, {hex(OF + 2048*k)}')
        for tt in range(2):
            acc, out = AO + 16*(k & 1) + 8*tt, OUT + 8*(k & 1) + 4*tt
            for i in range(4):
                e(f'v_cvt_pk_bf16_f32 v{out+i}, v{acc+2*i}, v{acc+2*i+1}')
            e(f'buffer_store_dwordx4 {vr(out,4)}, v{A16}, {WS}, s{sT} offen offset:{2048*(k & 1) + 1024*tt} sc1')
    pv(0)
    for k in range(6):
        if k < 5:
            pv(k + 1)
        put(k)

    def publish():
        e(f'''s_sub_u32 s6, s{sS}, 1
              v_mov_b32 v{TMP}, s6
              s_mov_b64 exec, 1
              buffer_store_dword v{TMP}, v{AFA}, {WS}, 0 offen sc1
              s_mov_b64 exec, -1''')
    e(f'''s_add_u32 s{sS}, s{sS}, 2
          s_add_u32 s{sSEG}, s{sSEG}, {2*SEG}
          v_add_u32 v{L4S}, {2*XSTEP}, v{L4S}
          s_cmp_ge_u32 s{sS}, 64
          s_cbranch_scc1 {fin}
          buffer_load_dword v{TMP+1}, v{FLA}, {WS}, 0 offen sc1
          s_waitcnt vmcnt(0)''')
    publish()
    ok = e.newlabel('L_aok')
    e(f'''v_cmp_ge_u32 vcc, s{sS}, v{TMP+1}
          s_cbranch_vccz {ok}''')
    wait_proj()
    e.label(ok)
    loads()
    e(f's_branch {top}')
    e.label(fin)
    e('s_waitcnt vmcnt(0)')
    publish()
    e('s_endpgm')
```

```python
import math
import struct
from common import *

sB = 60
sT, sG, sOFF, sW1, sC, sROW, sW10 = 61, 62, 63, 64, 65, 66, 67
SRC, TRA, POS, NEG, OUTA, TMP = 1, 6, 8, 9, 10, 12
TRW = 16
XC, XP, OP_ = 256, 336, 416
AQ, AKC, AKP, AVC, AVP = 32, 52, 72, 92, 112
FR = 132
PQ, PKC, PKP, LG = 160, 170, 180, 190
AO = 32
FR2 = 192


def f2u(x):
    return struct.unpack('<I', struct.pack('<f', x))[0]


def brole(e, o):
    e.comment('---- sliding-window branch')
    e.label('L_b')
    e('s_barrier')
    arrive(e, TMP, TMP + 1)
    srd(e, SRD_A, P_BX, 2621440)
    srd(e, SRD_B, P_WQKV, 2457600)
    srd(e, SRD_C, P_BWO, 819200)
    srd(e, SRD_D, P_OUT, 5242880)
    scale = 20 ** -0.5
    for i in range(4):
        e(f'''s_lshl_b32 s6, s{S_W}, 8
              s_add_u32 s6, s6, {64*i}
              v_add_u32 v20, s6, v0
              v_mul_u32_u24 v21, 6554, v20
              v_lshrrev_b32 v21, 16, v21
              v_mul_u32_u24 v22, 10, v21
              v_sub_u32 v22, v20, v22
              v_lshrrev_b32 v23, 5, v21
              v_and_b32 v24, 0x13, v21
              v_and_b32 v25, 4, v21
              v_lshl_add_u32 v24, v25, 1, v24
              v_and_b32 v25, 8, v21
              v_lshrrev_b32 v25, 1, v25
              v_add_u32 v24, v24, v25
              v_mul_u32_u24 v24, 3840, v24
              v_lshl_add_u32 v24, v22, 4, v24
              v_mul_u32_u24 v25, 1280, v23
              v_add_u32 v24, v24, v25
              v_mov_b32 v25, 0x40000000
              v_cmp_gt_u32 vcc, 3, v23
              v_cndmask_b32 v{SRC+i}, v25, v24, vcc''')
    e(f'''s_lshl_b32 s{sW1}, s{S_W}, 12
          s_mov_b32 s{sOFF}, 0''')

    def issue(slot):
        for i in range(4):
            e(f'''s_add_u32 m0, s{sW1}, {slot*16384 + i*1024}
                  buffer_load_dwordx4 v{SRC+i}, {sr(SRD_B,4)}, s{sOFF} offen lds''')

    def advance(ks):
        e(f's_add_u32 s{sOFF}, s{sOFF}, {32*3840}' if ks != 19 else f's_sub_u32 s{sOFF}, s{sOFF}, {19*32*3840 - 160}')
    for ks in range(4):
        issue(ks)
        advance(ks)
    e(f'''v_and_b32 v20, 15, v0
          v_lshrrev_b32 v21, 4, v0
          s_lshl_b32 s6, s{sB}, 2
          s_add_u32 s6, s6, s{S_W}
          s_lshl_b32 s6, s6, 4
          v_add_u32 v{POS}, s6, v20
          v_mul_u32_u24 v22, 1280, v{POS}
          v_lshl_add_u32 v22, v21, 4, v22
          v_max_u32 v23, 16, v{POS}
          v_subrev_u32 v23, 16, v23
          v_mul_u32_u24 v23, 1280, v23
          v_lshl_add_u32 v23, v21, 4, v23''')
    for ks in range(20):
        e(f'''buffer_load_dwordx4 {vr(XC+4*ks,4)}, v22, {sr(SRD_A,4)}, 0 offen offset:{64*ks}
              buffer_load_dwordx4 {vr(XP+4*ks,4)}, v23, {sr(SRD_A,4)}, 0 offen offset:{64*ks}''')
    e(f'''v_mul_u32_u24 v22, 2560, v{POS}
          v_lshl_add_u32 v22, v21, 3, v22
          v_add_u32 v{OUTA}, 1280, v22
          v_bfe_u32 v22, v0, 2, 3
          v_lshrrev_b32 v23, 5, v0
          v_lshl_add_u32 v22, v23, 4, v22
          v_mul_u32_u24 v22, 160, v22
          v_and_b32 v23, 3, v0
          v_mul_u32_u24 v23, 40, v23
          v_add_u32 v{TRA}, v22, v23
          v_add_u32 v{TRA+1}, 49152, v{TRA}
          v_mov_b32 v{NEG}, {hex(f2u(-1e9 / scale))}
          s_mov_b32 s{sC}, {hex(f2u(scale * math.log2(math.e)))}
          s_mov_b32 s{sG}, 0
          s_waitcnt vmcnt(0)''')
    top = e.newlabel('L_bg')
    e.label(top)
    tiles = [(mt, t) for t in range(5) for mt in (1, 2, 0)]
    for ks in range(20):
        slot = ks % 5
        e('s_waitcnt vmcnt(12)\ns_barrier')

        def rd(i):
            mt, t = tiles[i]
            hi = slot >= 3
            for u in range(2):
                off = slot*16384 - 49152*hi + mt*5120 + u*1280 + t*8
                e(f'ds_read_b64_tr_b16 {vr(FR + 4*(i % 6) + 2*u, 2)}, v{TRA+hi} offset:{off}')
        for i in range(5):
            rd(i)
        issue((ks + 4) % 5)
        advance((ks + 4) % 20)
        for i in range(15):
            if i + 5 < 15:
                rd(i + 5)
            e(f's_waitcnt lgkmcnt({min(10, 2*(14-i))})')
            mt, t = tiles[i]
            w = vr(FR + 4*(i % 6), 4)
            for acc, x in ([(AQ, XC)], [(AKC, XC), (AKP, XP)], [(AVC, XC), (AVP, XP)])[mt]:
                a = vr(acc + 4*t, 4)
                e(f'v_mfma_f32_16x16x32_bf16 {a}, {w}, {vr(x+4*ks,4)}, {a if ks else 0}')
    for i in range(70):
        e(f'v_accvgpr_mov_b32 {vr(OP_+i)}, {vr(OP_+i+10)}')
    for dst, src in ((PKC, AKC), (PKP, AKP), (PQ, AQ)):
        for i in range(10):
            e(f'v_cvt_pk_bf16_f32 v{dst+i}, v{src+2*i}, v{src+2*i+1}')
    for w in range(8):
        e(f'v_mov_b32 v{LG+w}, 0')
    full = 'row_mask:0xf bank_mask:0xf'
    for i in range(10):
        e(f'v_dot2c_f32_bf16 v{LG}, v{PKC+i}, v{PQ+i}')
        for w in range(1, 8):
            e(f'v_dot2c_f32_bf16_dpp v{LG+w}, v{PKC+i}, v{PQ+i} row_shr:{2*w} {full}')
        for w in range(1, 8):
            e(f'v_dot2c_f32_bf16_dpp v{LG+w}, v{PKP+i}, v{PQ+i} row_shl:{16-2*w} {full}')
    for w in range(1, 8):
        e(f'''v_cmp_le_u32 vcc, {2*w}, v{POS}
              v_cndmask_b32 v{LG+w}, v{NEG}, v{LG+w}, vcc''')
    e(f'''v_max3_f32 v{TMP}, v{LG}, v{LG+1}, v{LG+2}
          v_max3_f32 v{TMP}, v{TMP}, v{LG+3}, v{LG+4}
          v_max3_f32 v{TMP}, v{TMP}, v{LG+5}, v{LG+6}
          v_max_f32 v{TMP}, v{TMP}, v{LG+7}
          v_mul_f32 v{TMP}, s{sC}, v{TMP}''')
    for w in range(8):
        e(f'v_fma_f32 v{LG+w}, v{LG+w}, s{sC}, -v{TMP}')
    for w in range(8):
        e(f'v_exp_f32 v{LG+w}, v{LG+w}')
    e(f'v_add_f32 v{TMP}, v{LG}, v{LG+1}')
    for w in range(2, 8):
        e(f'v_add_f32 v{TMP}, v{TMP}, v{LG+w}')
    e(f'v_rcp_f32 v{TMP}, v{TMP}')
    for w in range(8):
        e(f'v_mul_f32 v{LG+w}, v{LG+w}, v{TMP}')
    for d in range(20):
        e(f'v_mul_f32 v{AQ+d}, v{AVC+d}, v{LG}')
    for w in range(1, 8):
        for d in range(20):
            e(f'v_fmac_f32_dpp v{AQ+d}, v{AVC+d}, v{LG+w} row_shr:{2*w} {full}')
        for d in range(20):
            e(f'v_fmac_f32_dpp v{AQ+d}, v{AVP+d}, v{LG+w} row_shl:{16-2*w} {full}')
    for i in range(10):
        e(f'''v_cvt_pk_bf16_f32 v{PQ+i}, v{AQ+2*i}, v{AQ+2*i+1}
              v_accvgpr_write_b32 {vr(OP_+70+i)}, v{PQ+i}''')
    e(f'''s_add_u32 s{sG}, s{sG}, 1
          s_cmp_lt_u32 s{sG}, 8
          s_cbranch_scc1 {top}''')
    for i in range(5):
        e(f'''v_add_u32 v20, {64*i}, v0
              v_mul_u32_u24 v21, 820, v20
              v_lshrrev_b32 v21, 16, v21
              s_and_b32 s6, s{S_W}, 1
              s_lshl_b32 s6, s6, 2
              v_add_u32 v22, s6, v21
              v_lshlrev_b32 v22, 1, v22
              v_xor_b32 v20, v20, v22
              s_mul_i32 s6, s{S_W}, 25600
              v_lshl_add_u32 v{SRC+i}, v20, 4, s6''')
    e(f'''v_lshrrev_b32 v4, 4, v0
          s_mul_i32 s{sW10}, s{S_W}, 10240'''.replace('v4,', f'v{TMP},'))
    e(f'''v_mul_u32_u24 v{TMP}, 10240, v{TMP}
          v_bfe_u32 v{TMP+1}, v0, 2, 2
          v_mul_u32_u24 v{TMP+1}, 1280, v{TMP+1}
          v_and_b32 v{TMP+2}, 3, v0
          v_lshl_add_u32 v{TMP+1}, v{TMP+2}, 3, v{TMP+1}
          v_add_u32 v{TMP}, v{TMP}, v{TMP+1}
          v_bfe_u32 v{TMP+1}, v0, 2, 3''')
    for c in range(8):
        e(f'''v_xor_b32 v{TMP+2}, {c}, v{TMP+1}
              v_lshl_add_u32 v{TRW+c}, v{TMP+2}, 5, v{TMP}
              v_add_u32 v{TRW+8+c}, 81920, v{TRW+c}''')
    e('s_waitcnt vmcnt(0)\ns_barrier')

    def issue2(ks):
        for u in range(2):
            g_, d0 = divmod(8*ks + 4*u, 20)
            e(f's_mov_b32 s{sROW}, {(80*g_ + d0)*1280}')
            for i in range(5):
                e(f'''s_add_u32 m0, s{sW10}, {(ks % 4)*40960 + u*5120 + i*1024}
                      buffer_load_dwordx4 v{SRC+i}, {sr(SRD_C,4)}, s{sROW} offen lds''', tag=('w', ks))
    for ks in range(3):
        issue2(ks)
    for ks in range(20):
        slot = ks % 4
        e.wait_vm(('w', ks))
        e('s_barrier')

        def rd(ct):
            for u in range(2):
                off = (slot & 1)*40960 + u*5120 + (ct >> 3)*256
                e(f'ds_read_b64_tr_b16 {vr(FR2 + 4*(ct % 8) + 2*u, 2)}, v{TRW + 8*(slot >> 1) + (ct & 7)} offset:{off}')
        for ct in range(7):
            rd(ct)
        if ks + 3 < 20:
            issue2(ks + 3)
        for ct in range(40):
            e(f's_waitcnt lgkmcnt({min(12, 2*(39-ct))})')
            a = vr(AO + 4*ct, 4)
            e(f'v_mfma_f32_16x16x32_bf16 {a}, {vr(FR2 + 4*(ct % 8),4)}, {vr(OP_+4*ks,4)}, {a if ks else 0}')
            if ct + 7 < 40:
                rd(ct + 7)
    for ct in range(40):
        a = AO + 4*ct
        e(f'''v_cvt_pk_bf16_f32 v{a}, v{a}, v{a+1}
              v_cvt_pk_bf16_f32 v{a+1}, v{a+2}, v{a+3}
              buffer_store_dwordx2 {vr(a,2)}, v{OUTA}, {sr(SRD_D,4)}, 0 offen offset:{32*ct}''')
    e('s_endpgm')
```

```python
import math
import struct
from common import *

A16, AGL, AGS, RSS, RSL, SLX, SST, RST, QW, KW, QTR, KTR, OW, OR_ = range(1, 15)
VFA, KFA, FLA, IDX, FST, SOA = 16, 19, 20, 21, 22, 23
P = 24
FLV, STV, SENT = 34, 35, 36
SEL, ONES, KNX = 496, 500, 504
M = 40
AQ, AK, AV = 80, 84, 88
KFR = 92
VM_ = 100
VX = 108
QFR, AS, SO, SP0, SP1 = 120, 128, 120, 132, 138
T0 = 128
AO, SUM, OFR = 40, 52, 56
AP, PO = 148, 156
RSETS, RED = (40, 56, 120), 72
AG0, AG1 = 120, 132
TA = 144
WO = 160
WQ, WK, WV = 256, 336, 416
sJ, sH = S_XCC, S_TK
sS, sTAG, sC = 60, 61, 62
sOWN = 8
sPS = 12
sPV = 16
sPSN = 18
sAG = 20
sAGS = 26
sMASK = 72
sSEG, sNEED = 76, 78
sLO, sHI = 79, 35
sHM = 6
ST0 = 80
L_MEM, L_Q, L_K, L_SO, L_O = 0, 12288, 13312, 24576, 16384
SLOT = 24576


def f2u(x):
    return struct.unpack('<I', struct.pack('<f', x))[0]


def smf(e, acc, a, b):
    e(f'v_smfmac_f32_16x16x64_bf16 {vr(acc,4)}, {vr(a,4)}, {vr(b,8)}, v{IDX}')


def presum(e, acc, dst):
    e(f'''v_permlane32_swap_b32 v{acc}, v{acc+2}
          v_permlane32_swap_b32 v{acc+1}, v{acc+3}
          v_pk_add_f32 {vr(acc,2)}, {vr(acc,2)}, {vr(acc+2,2)}
          v_cvt_pk_bf16_f32 v{dst}, v{acc}, v{acc+1}''')


def startup(e, o):
    N, G, R, C = 40, 41, 42, 43
    srd(e, SRD_A, P_WQ, 7864320)
    srd(e, SRD_B, P_WK, 7864320)
    srd(e, SRD_C, P_WV, 7864320)
    srd(e, SRD_D, P_WO, 7864320)
    srd(e, 60, P_MEM0, 10240)
    sCB, sCH, sI, sT, sT2 = 64, 65, 66, 67, 68
    e(f'''v_and_b32 v{N}, 15, v0
          v_lshrrev_b32 v{G}, 4, v0
          v_bfe_u32 v{R}, v0, 2, 2
          v_and_b32 v{C}, 3, v0
          v_lshlrev_b32 v{A16}, 4, v0
          s_lshl_b32 s{sT}, s{S_W}, 10
          v_add_u32 v{AGL}, s{sT}, v{A16}
          v_mov_b32 v{SENT}, -1
          v_mov_b32 v{SENT+1}, -1
          v_mov_b32 v{SENT+2}, -1
          v_mov_b32 v{SENT+3}, -1
          s_lshl_b32 s{sI}, s{sJ}, 5
          s_add_u32 s{sI}, s{sI}, s{sH}''')
    e(f'''s_add_u32 s70, s{sH}, 2
          s_lshl_b32 s70, s70, 21''')
    xb_group(e, 70, 70, sH, f's{sJ}', 0, sT)
    e(f'''s_and_b32 s70, s70, 0xfffff000
          buffer_store_dwordx4 {vr(SENT,4)}, v{AGL}, {WS}, s70 offen sc1
          s_add_u32 s70, s70, 8192
          buffer_store_dwordx4 {vr(SENT,4)}, v{AGL}, {WS}, s70 offen sc1
          s_and_b32 s{sT}, s{sJ}, 1
          s_lshl_b32 s{sT}, s{sT}, 21
          s_lshl_b32 s{sT2}, s{sH}, 10
          s_add_u32 s{sT}, s{sT}, s{sT2}
          v_lshrrev_b32 v44, 2, v{AGL}
          buffer_store_dword v{SENT}, v44, {WS}, s{sT} offen sc1
          s_lshl_b32 s{sT}, s{sI}, 12
          s_add_u32 s{sT}, s{sT}, {hex(RS)}
          buffer_store_dwordx4 {vr(SENT,4)}, v{AGL}, {WS}, s{sT} offen
          v_add_u32 v{RSL}, s{sT}, v{A16}
          s_add_u32 s70, s{sH}, 2
          s_lshl_b32 s70, s70, 21''')
    xb_group(e, 70, 70, sH, 3, f's{sJ}', sT)
    e(f'''v_lshl_add_u32 v{FST}, v0, 2, s70
          v_mov_b32 v44, 0
          s_movk_i32 s70, 0x2000
          buffer_store_dword v44, v{FST}, {WS}, 0 offen sc1
          buffer_store_dword v44, v{FST}, {WS}, s70 offen sc1
          s_lshl_b32 s{sT}, s{sH}, 7
          v_min_u32 v44, 5, v0
          s_add_u32 s{sT}, s{sT}, {hex(FLAGS)}
          v_lshl_add_u32 v{FLA}, v44, 2, s{sT}''', tag='init')
    e(f'''v_and_b32 v44, 7, v0
          v_mul_u32_u24 v44, 1280, v44
          v_lshl_add_u32 v44, v{G}, 5, v44
          v_bfe_u32 v45, v0, 3, 1
          v_lshl_add_u32 v44, v45, 4, v44
          s_lshl_b32 s{sT}, s{S_W}, 7''')
    for i in range(3):
        e(f'buffer_load_dwordx4 {vr(AG0+4*i,4)}, v44, s[60:63], s{sT} offen offset:{512*i}')
    Q0, Q1, O0, O1, TQ, TO0, TO1, TT, TT1 = 46, 47, 48, 49, 50, 51, 52, 53, 54
    e(f'''s_mul_i32 s{sCB}, s{sJ}, 3
          s_add_u32 s{sCB}, s{sCB}, 1
          s_min_u32 s{sT}, s{S_W}, 2
          s_cmp_eq_u32 s{sJ}, 0
          s_cselect_b32 s{sCB}, 0, s{sCB}
          s_cselect_b32 s{sT}, s{S_W}, s{sT}
          s_add_u32 s{sCH}, s{sCB}, s{sT}
          v_lshrrev_b32 v44, 3, v0
          s_lshl_b32 s{sT}, s{S_W}, 4
          v_add_u32 v45, s{sT}, v44
          v_mul_u32_u24 v45, 12288, v45
          s_mul_i32 s{sT}, s{sH}, 384
          s_lshl_b32 s{sT2}, s{sJ}, 7
          s_add_u32 s{sT}, s{sT}, s{sT2}
          v_add_u32 v45, s{sT}, v45
          v_and_b32 v55, 7, v0
          v_lshrrev_b32 v56, 5, v0
          v_lshlrev_b32 v56, 1, v56
          v_xor_b32 v56, v56, v55
          v_lshl_add_u32 v{Q0}, v56, 4, v45
          v_xor_b32 v56, 4, v56
          v_lshl_add_u32 v{Q1}, v56, 4, v45
          v_add_u32 v{Q1}, {8*12288}, v{Q1}
          v_mul_u32_u24 v45, 1280, v44
          s_lshl_b32 s{sT}, s{sCH}, 7
          v_add_u32 v45, s{sT}, v45
          v_lshl_add_u32 v{O0}, v55, 4, v45
          v_xor_b32 v55, 2, v55
          v_lshl_add_u32 v{O1}, v55, 4, v45
          v_add_u32 v{O1}, {16*1280}, v{O1}''')
    e(f'''v_lshrrev_b32 v44, 1, v{G}
          v_and_b32 v45, 1, v{G}
          v_lshrrev_b32 v55, 1, v{R}
          v_and_b32 v56, 1, v{R}
          v_lshlrev_b32 v57, 4, v44
          v_lshl_add_u32 v57, v55, 3, v57
          v_lshl_add_u32 v57, v45, 2, v57
          v_add_u32 v57, v57, v56
          v_lshlrev_b32 v57, 7, v57
          v_lshl_add_u32 v58, v55, 1, v45
          v_xor_b32 v59, s{S_W}, v58
          v_lshl_add_u32 v57, v59, 5, v57
          v_lshl_add_u32 v{TQ}, v{C}, 3, v57
          v_lshlrev_b32 v57, 4, v45
          v_lshl_add_u32 v57, v44, 2, v57
          v_add_u32 v57, v57, v56
          v_lshlrev_b32 v57, 7, v57
          v_lshl_add_u32 v57, v{C}, 3, v57
          s_lshl_b32 s{sT}, s{S_W}, 12
          v_add_u32 v57, s{sT}, v57
          v_lshl_add_u32 v{TO0}, v58, 5, v57
          v_xor_b32 v58, 1, v58
          v_lshl_add_u32 v{TO1}, v58, 5, v57''')
    sW2, sW4, sJR = 69, 70, 71
    e(f'''s_lshl_b32 s{sW2}, s{S_W}, 11
          s_lshl_b32 s{sW4}, s{S_W}, 12''')
    for k in range(3):
        e(f'''s_add_u32 s{sT}, s{sJ}, {k}
              s_sub_u32 s{sT2}, s{sT}, 3
              s_cmp_ge_u32 s{sT}, 3
              s_cselect_b32 s{sT}, s{sT2}, s{sT}
              s_mov_b32 s{74+k}, s{sT}
              s_lshl_b32 s{sT}, s{sT}, 6
              s_mul_i32 s{sT2}, s{sH}, 192
              s_add_u32 s{sT}, s{sT}, s{sT2}
              s_mul_i32 s{sJR+k}, s{sT}, 1280''')
    pol = o.get('wpol', '')

    def issue(i):
        base = (i % 6) * SLOT
        if i < 10:
            e(f's_mov_b32 s{sT}, {hex(i*786432)}')
            for mt, s in enumerate((SRD_A, SRD_B, SRD_C)):
                for b in range(2):
                    e(f'''s_add_u32 m0, s{sW2}, {base + mt*8192 + b*1024}
                          buffer_load_dwordx4 v{Q0+b}, {sr(s,4)}, s{sT} offen lds {pol}''', tag=('w', i))
        else:
            k = i - 10
            for sl in range(4):
                e(f'''s_add_u32 s{sT}, s{sJR + (k >> 1)}, {(32*(k & 1) + 8*(sl & 1))*1280}
                      s_add_u32 m0, s{sW4}, {base + sl*1024}
                      buffer_load_dwordx4 v{O0 + (sl >> 1)}, {sr(SRD_D,4)}, s{sT} offen lds {pol}''', tag=('w', i))

    for i in range(5):
        issue(i)
    e.wait_vm('init')
    e('s_barrier')
    arrive(e, 44, 45)
    for i in range(16):
        base = (i % 6) * SLOT
        e.wait_vm(('w', i), 'lgkmcnt(0)')
        e('s_barrier')
        if i + 5 < 16:
            issue(i + 5)
        if i < 10:
            e(f'v_add_u32 v{TT}, {base}, v{TQ}')
            for mt, w in enumerate((WQ, WK, WV)):
                for rho in range(4):
                    e(f'ds_read_b64_tr_b16 {vr(w + 8*i + 2*rho, 2)}, v{TT} offset:{mt*8192 + (32*(rho >> 1) + 2*(rho & 1))*128}')
        else:
            k = i - 10
            e(f'''v_add_u32 v{TT}, {base}, v{TO0}
                  v_add_u32 v{TT1}, {base}, v{TO1}''')
            for dt in range(2):
                for rho in range(4):
                    e(f'ds_read_b64_tr_b16 {vr(WO + 16*k + 8*dt + 2*rho, 2)}, v{TT+dt} offset:{(8*(rho >> 1) + 2*(rho & 1))*128}')
    e(f'''v_and_b32 v44, 7, v0
          v_bfe_u32 v45, v0, 3, 1
          v_and_b32 v55, 1, v{G}
          v_lshrrev_b32 v56, 1, v{G}
          v_lshlrev_b32 v57, 3, v55
          v_lshl_add_u32 v57, v56, 2, v57
          v_cmp_ne_u32 vcc, 0, v45''')
    e(f'''s_lshl_b32 s{sT}, s{S_W}, 8
          v_lshlrev_b32 v{SLX}, 2, v0
          v_add_u32 v{SST}, s{sT}, v{SLX}
          v_add_u32 v{RST}, {XSTEP}, v{A16}
          s_add_u32 s{sT}, s{sT}, {L_Q}
          v_lshl_add_u32 v58, v{N}, 4, v57
          v_add_u32 v{QW}, s{sT}, v58
          s_lshl_b32 s{sT}, s{S_W}, 9
          s_add_u32 s{sT}, s{sT}, {L_K}
          v_lshlrev_b32 v58, 3, v{G}
          v_lshl_add_u32 v58, v{N}, 5, v58
          v_add_u32 v{KW}, s{sT}, v58
          v_lshl_add_u32 v58, v{G}, 2, v{R}
          v_and_b32 v59, 1, v0
          v_lshlrev_b32 v59, 3, v59
          v_lshl_add_u32 v59, v58, 4, v59
          v_add_u32 v{QTR}, {L_Q}, v59
          v_lshlrev_b32 v59, 3, v{C}
          v_lshl_add_u32 v59, v58, 5, v59
          v_add_u32 v{KTR}, {L_K}, v59
          v_lshlrev_b32 v58, 3, v0
          v_add_u32 v{SOA}, {L_SO}, v58
          s_mul_i32 s{sT}, s{sH}, {HS}
          s_lshl_b32 s{sT2}, s{sJ}, 12
          s_add_u32 s{sT}, s{sT}, s{sT2}
          s_add_u32 s{sT}, s{sT}, {hex(KF)}
          v_add_u32 v{KFA}, s{sT}, v{AGL}''')
    for k in range(3):
        e(f'''s_mul_i32 s{sT}, s{sH}, {HS}
              s_lshl_b32 s{sT2}, s{74+k}, 12
              s_add_u32 s{sT}, s{sT}, s{sT2}
              s_add_u32 s{sT}, s{sT}, {hex(VF)}
              v_add_u32 v{VFA+k}, s{sT}, v{AGL}''')
    e(f'''v_lshlrev_b32 v58, 7, v{G}
          v_lshl_add_u32 v58, v44, 4, v58
          v_add_u32 v{OR_}, {L_O}, v58
          s_lshr_b32 s{sT}, s{S_W}, 1
          s_lshl_b32 s{sT}, s{sT}, 9
          s_and_b32 s{sT2}, s{S_W}, 1
          s_lshl_b32 s{sT2}, s{sT2}, 3
          s_add_u32 s{sT}, s{sT}, s{sT2}
          v_add_u32 v58, s{sT}, v{OR_}
          v_lshl_add_u32 v{OW}, v45, 12, v58
          v_lshrrev_b32 v58, 7, v{AGL}
          {'v_add_u32 v59, s%d, v58' % sH if o.get('swz', 1) else 'v_mov_b32 v59, s%d' % sH}
          v_and_b32 v59, 31, v59
          v_lshlrev_b32 v58, 12, v58
          v_lshl_add_u32 v58, v59, 7, v58
          v_lshl_add_u32 v58, v44, 4, v58
          s_lshl_b32 s{sT}, s{sJ}, 17
          s_add_u32 s{sT}, s{sT}, {hex(RS)}
          v_add_u32 v{RSS}, s{sT}, v58
          v_mov_b32 v58, 0x4444
          v_mov_b32 v59, 0xeeee
          v_cndmask_b32 v{IDX}, v58, v59, vcc
          v_and_b32 v58, 1, v0
          v_lshlrev_b32 v58, 4, v58
          v_mov_b32 v59, 0x3f80
          v_lshlrev_b32 v58, v58, v59
          v_lshrrev_b32 v59, 1, v44''')
    for d in range(4):
        e(f'''v_cmp_eq_u32 vcc, {d}, v59
              v_cndmask_b32 v60, 0, v58, vcc
              v_accvgpr_write_b32 {vr(SEL+d)}, v60''')
    e('v_mov_b32 v59, 0x3f803f80')
    for d in range(4):
        e(f'v_accvgpr_write_b32 {vr(ONES+d)}, v59')
    for r in [P + 5, P + 6, P + 7] + list(range(VM_, VM_ + 8)):
        e(f'v_mov_b32 v{r}, 0')
    start_wait(e, 58, sMASK)
    if 'pol' in o:
        m = 0x55555555 if o['pol'] else 0xaaaaaaaa
        e(f's_mov_b32 s{sMASK}, {hex(m)}\ns_mov_b32 s{sMASK+1}, {hex(m)}')
    e(f'''s_lshr_b32 s{sT2}, s{sH}, 3
          s_add_u32 s{sT}, s{sCB}, s{sT2}
          s_cmp_ge_u32 s{sH}, 24
          s_cselect_b32 s{sT2}, s{sJ}, 0
          s_add_u32 s77, s{sT2}, 9
          s_cmp_lg_u32 s{sT2}, 0
          s_cselect_b32 s{sT}, s77, s{sT}
          s_lshr_b32 s{sT2}, s{sT}, 3
          s_lshl_b32 s{sT2}, s{sT2}, 14
          s_and_b32 s{sT}, s{sT}, 7
          s_lshl_b32 s{sT}, s{sT}, 10
          s_add_u32 s{sT}, s{sT}, s{sT2}
          s_and_b32 s{sT2}, s{sH}, 7
          s_lshl_b32 s{sT2}, s{sT2}, 7
          s_add_u32 s{sT}, s{sT}, s{sT2}
          s_and_b32 s{sAG}, s{sMASK}, 1
          s_lshl_b32 s{sAG}, s{sAG}, 13
          s_and_b32 s{sAG+3}, s{sMASK}, 2
          s_lshl_b32 s{sAG+3}, s{sAG+3}, 12
          s_add_u32 s{sAG+3}, s{sAG+3}, {hex(AG_COPY)}
          s_add_u32 s{sAG+1}, s{sAG}, 4096
          s_add_u32 s{sAG+2}, s{sAG}, 16384
          s_add_u32 s{sAG+4}, s{sAG+3}, 4096
          s_add_u32 s{sAG+5}, s{sAG+3}, 16384
          s_mov_b32 s{sAGS}, 0
          v_lshl_add_u32 v59, v44, 4, v57
          v_cmp_ne_u32 vcc, 0, v45
          v_mov_b32 v60, s{sAG}
          v_mov_b32 v61, s{sAG+3}
          v_cndmask_b32 v60, v60, v61, vcc
          v_add3_u32 v{AGS}, v59, v60, s{sT}''')
    xb_base(e, 64, sH, sMASK, 66)
    e(f'v_add_u32 v{FST}, s66, v{FST}')
    for g_ in range(4):
        xb_group(e, sOWN + g_, 64, sH, 's74', g_, 66)
    for k in range(2):
        xb_group(e, sPS + k, 64, sH, f's{75+k}', 0, 66)
        xb_group(e, sPS + 2 + k, 64, sH, f's{75+k}', 1, 66)
        xb_group(e, sPV + k, 64, sH, f's{75+k}', 2, 66)
    c = (192 ** -0.5) * math.log2(math.e)
    e(f'''v_cmp_ne_u32 s[{sHM}:{sHM+1}], 0, v45
          s_mov_b32 s{sS}, 0
          s_mov_b32 s{sTAG}, 0
          s_mov_b32 s{sC}, {hex(f2u(c))}
          s_mov_b32 s{sLO}, 0x3f80
          s_mov_b32 s{sHI}, 0x3f800000
          s_mov_b32 s{sSEG}, 0
          s_mov_b32 s33, 0
          s_mov_b32 s{sNEED}, 2''')
    e(f's_waitcnt lgkmcnt(0)\ns_barrier')
    for i in range(3):
        e(f'ds_write_b128 v{AGL}, {vr(AG0+4*i,4)} offset:{4096*i}')
    for r in list(range(AQ, AQ + 12)) + list(range(AP, AP + 8)):
        e(f'v_mov_b32 v{r}, 0')
    flag_wait(e, True)
    for k in range(2):
        e(f'buffer_load_dwordx4 {vr(KFR+4*k,4)}, v{KFA}, {WS}, 0 offen offset:{2048*k} sc1')
    for k in range(3):
        e(f'buffer_load_dwordx4 {vr(VX+4*k,4)}, v{VFA+k}, {WS}, 0 offen sc1')
    e(f'v_add_u32 v{KFA}, {SEG}, v{KFA}')
    e(f'''s_waitcnt vmcnt(0) lgkmcnt(0)
          s_barrier''')


def slot_scalars(e, W):
    e(f's_xor_b32 s{sTAG}, s{sTAG}, 1')
    for r in range(sAG, sAG + 7):
        e(f's_add_u32 s{r}, s{r}, {XSTEP}')
    e(f'''s_cmp_eq_u32 s{sS}, 63
          s_cselect_b32 s{sPSN}, {hex(WS_SIZE)}, s{sOWN+W}''')


def flag_wait(e, first=False, cold=None):
    l, ok = e.newlabel('L_fw'), e.newlabel('L_fwok')

    def spin():
        e.label(l)
        e(f'''buffer_load_dword v{FLV}, v{FLA}, {WS}, 0 offen sc1
              s_waitcnt vmcnt(0)
              v_cmp_gt_u32 vcc, s{sNEED}, v{FLV}
              s_cbranch_vccz {ok}''')
        guard(e, l)
    if first:
        spin()
    else:
        e(f'''v_cmp_gt_u32 vcc, s{sNEED}, v{FLV}
              s_cbranch_vccnz {l}''')
        cold.append(spin)
    e.label(ok)


def sentinel_check(e, regs, tmp, fail):
    regs = list(regs)
    cur = None
    while regs:
        if cur is None:
            take, regs = regs[:3], regs[3:]
        else:
            take, regs = [cur] + regs[:2], regs[2:]
        if len(take) == 3:
            e(f'v_max3_u32 v{tmp}, v{take[0]}, v{take[1]}, v{take[2]}')
        else:
            e(f'v_max_u32 v{tmp}, v{take[0]}, v{take[1]}')
        cur = tmp
    e(f'''v_cmp_eq_u32 vcc, -1, v{tmp}
          s_cbranch_vccnz {fail}''')


def body(e, W, o, cold):
    nst = [0]
    dbg = o.get('stamps')

    pts = o.get('pts', 'top,qkdone,Sst,preS,Sok,Vok,owr,RSst,pub,AGarr,AGwr').split(',')

    def stamp(name):
        if dbg and name in pts:
            k = pts.index(name)
            e(f's_memtime s[{ST0+2*k}:{ST0+2*k+1}]')

    def count(v):
        if dbg:
            e(f's_add_u32 s33, s33, {hex(v)}')

    def delay(key):
        for i in range(o.get(key, 0)):
            e(f'v_mov_b32 v{TA}, 0')

    def pf_v(k):
        e(f'buffer_load_dwordx4 {vr(VX+4*k,4)}, v{VFA+k}, {WS}, s{sSEG} offen sc1')

    def pf_k(k):
        e(f'buffer_load_dwordx4 {vr(KNX+4*k,4)}, v{KFA}, {WS}, s{sSEG} offen offset:{2048*k} sc1')

    def export():
        e(f'buffer_store_dword v{VM_+1}, v{SST}, {WS}, s{sOWN+3} offen sc1')
    NC = o.get('scopies', 1)
    top, fin = f'L_c{W}_top', f'L_c{W}_fin'
    dpp = 'row_ror:8 row_mask:0xf bank_mask:0xf'
    hm = f's[{sHM}:{sHM+1}]'
    e.label(top)
    stamp('top')
    if dbg:
        e('s_memrealtime s[0:1]')
    for f in range(10):
        e(f'ds_read_b128 {vr(M+4*f,4)}, v{A16} offset:{L_MEM + 1024*f}')
    side = [lambda k=k: pf_v(k) for k in range(1, 3)]
    if W in (0, 2) or (W == 1 and NC > 1) or (W == 3 and o.get('touchk', 1)):
        side.insert(0, lambda: e(f'buffer_store_dwordx4 {vr(SENT,4)}, v{RST}, {WS}, s{sPSN} offen sc1'))
    if W < 2 and o.get('kpf', 1):
        side += [lambda k=k: pf_k(k) for k in range(2)]
    if W == 2:
        side.append(lambda: e(f'buffer_load_dword v{FLV}, v{FLA}, {WS}, 0 offen sc1'))

    def progress():
        e(f'''v_mov_b32 v{TA+1}, s{sS}
              s_mov_b64 exec, 0xffff
              buffer_store_dword v{TA+1}, v{FST}, {WS}, 0 offen sc1
              s_mov_b64 exec, -1''')
    if W == 3:
        side.append(progress)
    side.pop(0)()
    NI = 3
    for f in range(NI):
        e(f's_waitcnt lgkmcnt({9-f})')
        smf(e, AQ, M + 4*f, WQ + 8*f)
        smf(e, AK, M + 4*f, WK + 8*f)
        if side:
            side.pop(0)()
    for f in range(NI, 10):
        e(f's_waitcnt lgkmcnt({9-f})')
        smf(e, AQ, M + 4*f, WQ + 8*f)
        if side and f % 2 == 0:
            side.pop(0)()
    assert not side
    for f in range(NI, 10):
        smf(e, AK, M + 4*f, WK + 8*f)
    presum(e, AQ, AQ)
    e(f'ds_write_b32 v{QW}, v{AQ}')
    presum(e, AK, VM_ + 1)
    e(f'ds_write_b32 v{KW}, v{VM_+1}')
    e.wait_vm('AGB', 'lgkmcnt(0)')
    stamp('qkdone')
    e('s_barrier')
    NV = 0
    if W < 3:
        for k in range(2):
            for u in range(2):
                e(f'ds_read_b64_tr_b16 {vr(QFR+4*k+2*u,2)}, v{QTR} offset:{512*k + 256*u}')
            if W == 2:
                for u in range(2):
                    e(f'ds_read_b64_tr_b16 {vr(KFR+4*k+2*u,2)}, v{KTR} offset:{1024*k + 512*u}')
        NV = o.get('nv_early', 3)
        for f in range(NV):
            smf(e, AV, M + 4*f, WV + 8*f)
        e(f'''s_waitcnt lgkmcnt({2 if W < 2 else 4})
              v_mfma_f32_16x16x32_bf16 {vr(AS,4)}, {vr(KFR,4)}, {vr(QFR,4)}, 0
              s_waitcnt lgkmcnt(0)
              v_mfma_f32_16x16x32_bf16 {vr(AS,4)}, {vr(KFR+4,4)}, {vr(QFR+4,4)}, {vr(AS,4)}''')
        if W < 2:
            e(f'''v_cndmask_b32 v{AS}, v{AS}, v{AS+2}, {hm}
                  v_cndmask_b32 v{AS+1}, v{AS+1}, v{AS+3}, {hm}
                  v_cvt_pk_bf16_f32 v{AS+2}, v{AS}, v{AS+1}
                  v_min_u32 v{AS+2}, -2, v{AS+2}''')
        else:
            e(f'''v_cndmask_b32 v{AS}, v{AS}, v{AS+1}, {hm}
                  v_min_u32 v{AS+2}, -2, v{AS}''')
        for k in range(NC):
            e(f'buffer_store_dword v{AS+2}, v{SST}, {WS}, s{sOWN+k} offen sc1')
        e(f'ds_write_b64 v{SOA}, {vr(AS,2)} offset:{512*W}')
    stamp('Sst')
    for f in range(NV, 10):
        smf(e, AV, M + 4*f, WV + 8*f)

    def v_store():
        presum(e, AV, VM_)
        e(f'''v_min_u32 v{VM_}, -2, v{VM_}
              buffer_store_dword v{VM_}, v{SST}, {WS}, s{sOWN+2} offen sc1''')

    def s_loads(dst, tag, copy=0):
        for k in range(2):
            for p in range(3):
                e(f'buffer_load_dword v{dst+3*k+p}, v{SLX}, {WS}, s{sPS+2*copy+k} offen offset:{256*p} sc1', tag=tag)

    def v_loads():
        for k in range(2):
            e(f'buffer_load_dword v{VM_+2+2*k}, v{SST}, {WS}, s{sPV+k} offen sc1', tag='V')
    if W == 3:
        v_store()
    e(f'''s_waitcnt lgkmcnt(0)
          s_barrier''')
    stamp('B3')
    if W < 3:
        v_store()
    stamp('Vst')
    e(f'''s_cmp_eq_u32 s{sS}, {o.get('last', 63)}
          s_cbranch_scc1 {fin}''')
    for p in range(3):
        e(f'ds_read_b64 {vr(SO+2*p,2)}, v{SOA} offset:{512*p}')
    if W == 3:
        for r in range(AQ, AQ + 12):
            e(f'v_mov_b32 v{r}, 0')
    delay('dS')
    stamp('SA0')
    s_loads(SP0, 'SA')
    stamp('SA1')
    if W < 3:
        for r in range(AQ, AQ + 12):
            e(f'v_mov_b32 v{r}, 0')
    e(f'''s_add_u32 s{sNEED}, s{sS}, 3
          s_min_u32 s{sNEED}, s{sNEED}, 64
          s_add_u32 s{sSEG}, s{sSEG}, {0 if o.get('samepf') else SEG}''')
    delay('dV')
    v_loads()
    if o.get('exp', 0) == 0:
        export()
    stamp('preS')
    sfail, sok = e.newlabel('L_sf'), e.newlabel('L_sok')

    def s_add(src):
        for k in range(2):
            for i in range(4):
                e(f'v_dot2_f32_bf16 v{SO+i}, v{src + 3*k + (i >> 1)}, s{sHI if i & 1 else sLO}, v{SO+i}')
            e(f'v_add_f32 v{SO+4}, v{SO+4}, v{src + 3*k + 2}')
    e.wait_vm('SA', 'lgkmcnt(0)')
    stamp('SAarr')
    sentinel_check(e, range(SP0, SP0 + 6), TA, sfail)
    s_add(SP0)
    e.label(sok)

    def s_retry():
        lp, nxt, l2 = e.newlabel('L_sf1'), e.newlabel('L_sf2'), e.newlabel('L_sf3')
        e.label(sfail)
        count(1)
        s_loads(SP1, None, NC - 1)
        e.label(lp)
        s_loads(SP0, None)
        e('s_waitcnt vmcnt(6)')
        sentinel_check(e, range(SP1, SP1 + 6), TA, l2)
        s_add(SP1)
        e(f's_nop 1\ns_branch {sok}')
        e.label(l2)
        count(0x100)
        s_loads(SP1, None, NC - 1)
        e('s_waitcnt vmcnt(6)')
        sentinel_check(e, range(SP0, SP0 + 6), TA, nxt)
        s_add(SP0)
        e(f's_nop 1\ns_branch {sok}')
        e.label(nxt)
        guard(e, lp)
    cold.append(s_retry)
    stamp('Sok')
    a, b = T0, T0 + 1
    e(f'''v_max3_f32 v{a}, v{SO+4}, v{SO}, v{SO+1}
          v_max3_f32 v{a}, v{a}, v{SO+2}, v{SO+3}
          v_max_f32_dpp v{b}, v{a}, v{a} {dpp}
          v_max_f32_dpp v{a}, v{a}, v{a} {dpp}
          v_permlane16_swap_b32 v{a}, v{b}
          v_max_f32 v{T0+2}, v{a}, v{b}
          v_max_f32 v{b}, v{a}, v{b}
          v_permlane32_swap_b32 v{T0+2}, v{b}
          v_max_f32 v{a}, v{T0+2}, v{b}
          v_mul_f32 v{a}, s{sC}, v{a}''')
    order = [4, 0, 1, 2, 3]
    for i in order:
        e(f'v_fma_f32 v{SO+i}, v{SO+i}, s{sC}, -v{a}')
    for i in order:
        e(f'v_exp_f32 v{SO+i}, v{SO+i}')
    nv = e.vmcount('V')
    e(f'''v_mov_b32_dpp v{SO+5}, v{SO+4} {dpp}
          v_cvt_pk_bf16_f32 v{P}, v{SO}, v{SO+1}
          v_cvt_pk_bf16_f32 v{P+2}, v{SO+2}, v{SO+3}
          v_cvt_pk_bf16_f32 v{P+4}, v{SO+4}, v{SO+5}
          v_mov_b32_dpp v{P+1}, v{P} {dpp}
          v_mov_b32_dpp v{P+3}, v{P+2} {dpp}''')
    for k in range(3):
        e(f'v_mfma_f32_16x16x32_bf16 {vr(AO+4*k,4)}, {vr(VX+4*k,4)}, {vr(P,4)}, 0')
    vfail, vok = e.newlabel('L_vf'), e.newlabel('L_vok')
    e.wait_vm('V')
    sentinel_check(e, [VM_ + 2, VM_ + 4], TA, vfail)
    e.label(vok)

    def v_retry():
        e.label(vfail)
        count(0x10000)
        nxt = e.newlabel('L_vf2')
        v_loads()
        e('s_waitcnt vmcnt(0)')
        sentinel_check(e, [VM_ + 2, VM_ + 4], TA, nxt)
        e(f's_branch {vok}')
        e.label(nxt)
        guard(e, vfail)
    cold.append(v_retry)
    stamp('Vok')
    for k in range(3):
        e(f'v_mfma_f32_16x16x32_bf16 {vr(AO+4*k,4)}, {vr(VM_+2*k,4)}, {vr(P+4,4)}, {vr(AO+4*k,4)}')
    e(f'''v_mfma_f32_16x16x32_bf16 {vr(SUM,4)}, {vr(P,4)}, {vr(ONES,4)}, 0
          v_mfma_f32_16x16x32_bf16 {vr(SUM,4)}, {vr(P+4,4)}, {vr(ONES,4)}, {vr(SUM,4)}''')
    if W == 2:
        flag_wait(e, False, cold)
    if o.get('exp', 0) == 1:
        export()
    for k in range(3):
        e(f'''v_cvt_pk_bf16_f32 v{AO+4*k}, v{AO+4*k}, v{AO+4*k+1}
              v_cvt_pk_bf16_f32 v{AO+4*k+1}, v{AO+4*k+2}, v{AO+4*k+3}
              ds_write_b64 v{OW}, {vr(AO+4*k,2)} offset:{1024*k}''')
    side = []
    if side:
        side.pop(0)()
    for r in range(4):
        e(f'v_rcp_f32 v{SUM+r}, v{SUM+r}')
    e('s_waitcnt lgkmcnt(0)')
    stamp('owr')
    e('s_barrier')
    for k in range(6):
        e(f'ds_read_b128 {vr(OFR+4*k,4)}, v{OR_} offset:{512*k}')
    if side:
        side.pop(0)()
    for k in range(6):
        e(f's_waitcnt lgkmcnt({5-k})')
        smf(e, AP, OFR + 4*k, WO + 16*k)
        if side and k % 3 == 2:
            side.pop(0)()
    for k in range(6):
        smf(e, AP + 4, OFR + 4*k, WO + 16*k + 8)
    for dt in range(2):
        a = AP + 4*dt
        e(f'''v_pk_mul_f32 {vr(a,2)}, {vr(a,2)}, {vr(SUM,2)}
              v_pk_mul_f32 {vr(a+2,2)}, {vr(a+2,2)}, {vr(SUM+2,2)}
              v_cvt_pk_bf16_f32 v{PO+2*dt}, v{a}, v{a+1}
              v_cvt_pk_bf16_f32 v{PO+2*dt+1}, v{a+2}, v{a+3}''')
    e(f'''v_permlane16_swap_b32 v{PO}, v{PO+2}
          v_permlane16_swap_b32 v{PO+1}, v{PO+3}
          v_and_or_b32 v{PO}, v{PO}, -2, s{sTAG}
          buffer_store_dwordx4 {vr(PO,4)}, v{RSS}, {WS}, 0 offen''')
    stamp('RSst')
    while side:
        side.pop(0)()
    if W == 3:
        NS = o.get('ns', 2)

        def rs_load(dst):
            for k in range(4):
                e(f'buffer_load_dwordx4 {vr(dst+4*k,4)}, v{RSL}, {WS}, 0 offen offset:{1024*k} sc1')

        def rs_check(src):
            e(f'''s_waitcnt vmcnt({4*(NS-1)})
                  v_bitop3_b32 v{TA}, v{src}, v{src+4}, s{sTAG} bitop3:0x7e
                  v_bitop3_b32 v{TA+1}, v{src+8}, v{src+12}, s{sTAG} bitop3:0x7e
                  v_bitop3_b32 v{TA}, v{TA}, v{TA+1}, 1 bitop3:0xa8
                  v_cmp_ne_u32 vcc, 0, v{TA}''')
        lp, jn = e.newlabel('L_rs'), e.newlabel('L_rsj')
        got = [e.newlabel('L_rsg') for _ in RSETS]
        for r in range(AP, AP + 8):
            e(f'v_mov_b32 v{r}, 0')
        delay('dRS')
        for i in range(NS - 1):
            rs_load(RSETS[i])
            delay('dRS2')
        e.label(lp)
        for i in range(NS):
            rs_load(RSETS[(i - 1) % NS])
            rs_check(RSETS[i])
            e(f's_cbranch_vccz {got[i]}')
        guard(e, lp)
        for i in range(NS):
            e.label(got[i])
            for k in range(4):
                e(f'v_mfma_f32_16x16x32_bf16 {vr(RED,4)}, {vr(RSETS[i]+4*k,4)}, {vr(SEL,4)}, {vr(RED,4) if k else 0}')
            presum(e, RED, RED)
            e(f'''v_min_u32 v{RED}, -2, v{RED}
                  buffer_store_dword v{RED}, v{AGS}, {WS}, s{sAGS} offen sc1''')
            if i < NS - 1:
                e(f's_branch {jn}')
        e.label(jn)
    else:
        for r in range(AP, AP + 8):
            e(f'v_mov_b32 v{r}, 0')
        if W < 2:
            for r in range(8):
                e(f'v_accvgpr_read_b32 v{KFR+r}, {vr(KNX+r)}')
    stamp('pub')
    e('s_barrier')
    if W == 3:
        e(f'''s_add_u32 s2, s{sAGS}, {XSTEP}
              buffer_store_dword v{SENT}, v{AGS}, {WS}, s2 offen sc1''')
    for r in (SLX, SST, RST):
        e(f'v_add_u32 v{r}, {XSTEP}, v{r}')
    nf = 3 if W < 2 else 2

    def ag_loads(copy, dst, tag):
        for i in range(nf):
            s = sAG + 3 * copy + i
            e(f'buffer_load_dwordx4 {vr(dst+4*i,4)}, v{AGL}, {WS}, s{s} offen sc1', tag=tag)

    def ag_write(src):
        for i in range(nf):
            e(f'ds_write_b128 v{AGL}, {vr(src+4*i,4)} offset:{L_MEM + 4096*i}')
    delay('dAG')
    ag_loads(0, AG0, 'AGA')
    if dbg:
        e('s_waitcnt lgkmcnt(0)')
        for k in range(11):
            e(f'v_writelane_b32 v{STV}, s{ST0+2*k}, {k}')
        e(f'''v_writelane_b32 v{STV}, s{S_SPIN}, 15
              v_writelane_b32 v{STV}, s33, 14
              v_writelane_b32 v{STV}, s0, 13
              v_writelane_b32 v{STV}, s32, 12''')
    delay('dAG2')
    ag_loads(1, AG1, 'AGB')
    if dbg:
        e(f'''s_lshl_b32 s2, s{sJ}, 5
              s_add_u32 s2, s2, s{sH}
              s_lshl_b32 s2, s2, 2
              s_add_u32 s2, s2, {W}
              s_lshl_b32 s2, s2, 6
              s_add_u32 s2, s2, s{sS}
              s_lshl_b32 s2, s2, 6
              s_add_u32 s2, s2, {hex(o['stamps'])}
              v_lshlrev_b32 v{TA+2}, 2, v0
              s_mov_b64 exec, 0xffff
              buffer_store_dword v{STV}, v{TA+2}, {WS}, s2 offen
              s_mov_b64 exec, -1''')
    afail, aok = e.newlabel('L_af'), e.newlabel('L_aok')
    nb2 = e.vmcount('AGB')
    e.wait_vm('AGA')
    stamp('AGarr')
    sentinel_check(e, range(AG0, AG0 + 4*nf), TA, afail)
    ag_write(AG0)
    e.label(aok)

    def ag_retry():
        lp, nxt, gb = e.newlabel('L_af1'), e.newlabel('L_af2'), e.newlabel('L_af3')
        e.label(afail)
        count(0x1000000)
        ag_loads(0, AG0, None)
        e(f's_waitcnt vmcnt({nb2 + nf})')
        sentinel_check(e, range(AG1, AG1 + 4*nf), TA, lp)
        e.label(gb)
        ag_write(AG1)
        e(f's_branch {aok}')
        e.label(lp)
        if dbg:
            e('s_add_u32 s32, s32, 1')
        ag_loads(1, AG1, None)
        e(f's_waitcnt vmcnt({nf})')
        l2 = e.newlabel('L_af4')
        sentinel_check(e, range(AG0, AG0 + 4*nf), TA, l2)
        ag_write(AG0)
        e(f's_branch {aok}')
        e.label(l2)
        ag_loads(0, AG0, None)
        e(f's_waitcnt vmcnt({nf})')
        sentinel_check(e, range(AG1, AG1 + 4*nf), TA, nxt)
        e(f's_branch {gb}')
        e.label(nxt)
        guard(e, lp)
    cold.append(ag_retry)
    if dbg:
        e.vmq[-1] = 'AGB'
    pf_v(0)
    e(f's_add_u32 s{sS}, s{sS}, 1')
    slot_scalars(e, W)
    e('s_waitcnt lgkmcnt(0)')
    stamp('AGwr')
    e(f'''s_barrier
          s_branch {top}''')
    e.label(fin)
    n0 = len(e.vmq)
    export()
    e(f'''s_waitcnt vmcnt(0)
          s_barrier''')
    if W == 2:
        e(f'''v_mov_b32 v{TA}, 64
              s_mov_b64 exec, 0xffff
              buffer_store_dword v{TA}, v{FST}, {WS}, 0 offen sc1''')
    e('s_endpgm')
    del e.vmq[n0:]


def chain(e, o):
    startup(e, o)
    if o.get('stamps'):
        e('s_mov_b32 s32, 0')
    for W in range(1, 4):
        e(f'''s_mov_b32 s{sPSN}, s{sOWN+W}
              s_cmp_eq_u32 s{S_W}, {W}
              s_cbranch_scc1 L_c{W}_top''')
    e(f's_mov_b32 s{sPSN}, s{sOWN}\ns_branch L_c0_top')
    for W in range(4):
        e.vmq = ['AGB', None]
        cold = []
        e.raw('.p2align 6')
        body(e, W, o, cold)
        assert e.vmq[-2:] == ['AGB', None]
        for c in cold:
            c()
```

```python
from asmlib import *
from layout import *

WS = sr(SRD_WS, 4)
DBG = sr(SRD_DBG, 4)


def srd(e, idx, ptr, size):
    e(f'''s_mov_b32 s{idx}, s{ptr}
          s_and_b32 s{idx+1}, s{ptr+1}, 0xffff
          s_mov_b32 s{idx+2}, {hex(size)}
          s_mov_b32 s{idx+3}, 0x20000''')


def guard(e, back):
    e(f'''s_add_u32 s{S_SPIN}, s{S_SPIN}, 1
          s_cmp_lt_u32 s{S_SPIN}, {hex(SPIN_MAX)}
          s_cbranch_scc1 {back}
          s_endpgm''')


def arrive(e, vt0, vt1):
    e(f'''s_lshl_b32 s6, s{S_W}, 12
          s_add_u32 s6, s6, {DBG_BAR}
          v_mov_b32 v{vt0}, s6
          v_mov_b32 v{vt1}, 1
          s_mov_b64 exec, 1
          buffer_atomic_add v{vt1}, v{vt0}, {DBG}, 0 offen
          s_mov_b64 exec, -1''')


def start_wait(e, vt, s_mask=None):
    l, ok = e.newlabel('L_sw'), e.newlabel('L_swok')
    e(f'v_mov_b32 v{vt+3}, {DBG_BAR}')
    e.label(l)
    e(f'''buffer_load_dwordx3 v[{vt}:{vt+2}], v{vt+3}, {DBG}, 0 offen sc1
          s_waitcnt vmcnt(0)
          v_readfirstlane_b32 s6, v{vt}
          s_cmp_ge_u32 s6, 256
          s_cbranch_scc1 {ok}
          s_sleep 4''')
    guard(e, l)
    e.label(ok)
    if s_mask is not None:
        e(f'''v_readfirstlane_b32 s{s_mask}, v{vt+1}
              v_readfirstlane_b32 s{s_mask+1}, v{vt+2}''')


def xb_base(e, dst, s_h, s_mask, t):
    e(f'''s_add_u32 s{dst}, s{s_h}, 2
          s_lshr_b64 s[{t}:{t+1}], s[{s_mask}:{s_mask+1}], s{dst}
          s_and_b32 s{t}, s{t}, 1
          s_lshl_b32 s{t}, s{t}, 13
          s_lshl_b32 s{dst}, s{dst}, 21
          s_add_u32 s{dst}, s{dst}, s{t}''')


def xb_group(e, dst, s_base, s_h, s_j, grp, t):
    e(f'''s_add_u32 s{t}, s{s_h}, {s_j}
          s_bfe_u32 s{t+1}, s{t}, 0x10001
          s_lshl_b32 s{t+1}, s{t+1}, 14
          s_and_b32 s{t}, s{t}, 1
          s_lshl_b32 s{t}, s{t}, 12
          s_add_u32 s{t}, s{t}, s{t+1}
          s_bfe_u32 s{t+1}, s{s_h}, 0x20002
          s_xor_b32 s{t+1}, s{t+1}, {grp}
          s_lshl_b32 s{t+1}, s{t+1}, 10
          s_add_u32 s{t}, s{t}, s{t+1}
          s_add_u32 s{dst}, s{s_base}, s{t}''')


def prologue(e):
    e(f'''s_cmp_ge_u32 s2, 256
          s_cbranch_scc1 L_end
          s_load_dwordx16 s[8:23], s[0:1], 0
          s_load_dwordx8 s[24:31], s[0:1], 64
          s_load_dwordx2 s[32:33], s[0:1], 96
          s_getreg_b32 s{S_XCC}, hwreg(HW_REG_XCC_ID, 0, 4)
          v_lshrrev_b32 v1, 6, v0
          v_and_b32 v0, 63, v0
          v_readfirstlane_b32 s{S_W}, v1
          s_and_b32 s{S_XCC}, s{S_XCC}, 7
          s_mov_b32 s{S_SPIN}, 0
          v_mov_b32 v3, {LDS_TICKET}
          s_waitcnt lgkmcnt(0)''')
    srd(e, SRD_DBG, P_DBG, 256)
    e(f'''s_add_u32 s{P_WS}, s{P_WS}, 0x1fffff
          s_addc_u32 s{P_WS+1}, s{P_WS+1}, 0
          s_and_b32 s{P_WS}, s{P_WS}, 0xffe00000''')
    srd(e, SRD_WS, P_WS, WS_SIZE)
    e(f'''s_cmp_lg_u32 s{S_W}, 0
          s_cbranch_scc1 L_tk
          s_lshl_b32 s6, s{S_XCC}, 2
          v_mov_b32 v4, 1
          v_mov_b32 v5, 0
          v_mov_b32 v2, s6
          s_mov_b64 exec, 1
          buffer_atomic_add v4, v2, {DBG}, 0 offen sc0
          s_waitcnt vmcnt(0)
          ds_write_b64 v3, v[4:5]
          s_waitcnt lgkmcnt(0)
          s_mov_b64 exec, -1''')
    e.label('L_tk')
    e(f'''s_barrier
          ds_read_b32 v1, v3
          s_waitcnt lgkmcnt(0)
          v_readfirstlane_b32 s{S_TK}, v1
          s_cmp_ge_u32 s{S_TK}, 32
          s_cbranch_scc1 L_end''')


def probe(e, s_page, rounds=4):
    skip = e.newlabel('L_prs')
    e(f'''s_cmp_lg_u32 s{S_W}, 0
          s_cbranch_scc1 {skip}
          s_add_u32 s62, s{s_page}, 1
          s_bfe_u32 s63, s62, 0x10001
          s_lshl_b32 s63, s63, 14
          s_and_b32 s62, s62, 1
          s_lshl_b32 s62, s62, 12
          s_add_u32 s62, s62, s63
          s_lshl_b32 s63, s{s_page}, 21
          s_add_u32 s62, s62, s63
          s_add_u32 s62, s62, {hex(63 * XSTEP)}
          v_lshl_add_u32 v4, v0, 2, s62
          v_add_u32 v5, 8192, v4
          s_mov_b32 s62, -1
          s_mov_b32 s63, -1''')
    for i in range(rounds + 1):
        for k in range(2):
            e(f'''s_memtime s[64:65]
                  buffer_store_dword v4, v{4+k}, {WS}, 0 offen sc1
                  s_waitcnt vmcnt(0)
                  s_memtime s[66:67]
                  s_waitcnt lgkmcnt(0)
                  s_sub_u32 s64, s66, s64
                  s_min_u32 s{62+k}, s{62+k}, s64''')
    e(f'''s_cmp_lt_u32 s63, s62
          s_cselect_b32 s62, 1, 0
          s_lshr_b32 s63, s{S_XCC}, 2
          s_xor_b32 s62, s62, s63
          s_and_b32 s63, s{s_page}, 31
          s_lshl_b32 s62, s62, s63
          s_lshr_b32 s63, s{s_page}, 5
          s_lshl_b32 s63, s63, 2
          s_add_u32 s63, s63, {DBG_BAR + 4}
          v_mov_b32 v4, s62
          v_mov_b32 v5, s63
          s_mov_b64 exec, 1
          buffer_atomic_or v4, v5, {DBG}, 0 offen
          s_waitcnt vmcnt(0)
          s_mov_b64 exec, -1''')
    e.label(skip)
```

```python
NAME = 'concat_heads__memory_aug_recurrent_mem_tr__sliding_local_dilated__prompt'

HS = 786432
SEG = 12288
AGB = 0
AG_COPY = 0x200000
XB = 0x400000
XSTEP = 0x8000
RS = 0x4400000
FLAGS = 0x4480000
AFLAGS = 0x4482000
OPX = 0x4490000
KF = 0x4600000
VF = 0x5E00000
QF = 0x7600000
OF = 0x8E00000
STAMPS = 0xA800000
WS_SIZE = 0x0FE00000
LDS_BYTES = 163840
LDS_TICKET = LDS_BYTES - 16

S_XCC, S_TK, S_W = 3, 4, 5
P_X, P_MEM0, P_WQ, P_WK, P_WV, P_WO, P_BX, P_WQKV, P_BWO, P_OUT, P_DBG, P_WS = 8, 10, 12, 14, 16, 18, 22, 24, 26, 28, 30, 32
SRD_WS, SRD_DBG, SRD_A, SRD_B, SRD_C, SRD_D = 36, 40, 44, 48, 52, 56
S_SPIN = 34
SPIN_MAX = 0x40000
DBG_BAR = 128


def page(p):
    return (p >> 1) * 16384 + (p & 1) * 4096


def xb_off(h, j, grp):
    return page((j + h) & 3) + ((grp ^ (h >> 2)) & 3) * 1024
```

```python
from common import *

sG, sI = 60, 61
sS, sT, sRB, sSEG, sLB, sTAG, sXO, sXI, sOUT, sIT, sH0 = 62, 63, 64, 65, 66, 67, 68, 69, 70, 71, 72
WSRC, TR, OA, FLA, A16, XA, OUTA, TMP, LW, LR = 1, 2, 6, 8, 9, 10, 11, 12, 16, 17
ACC, RG, WV_ = 32, 64, 128
NR = 16


def wreg(ks, ct):
    i = 16 * ks + 4 * ct
    return 256 + i if i < 256 else WV_ + i - 256


def op(e, o):
    e.comment('---- output projection')
    e.label('L_op')
    srd(e, SRD_A, P_WO, 7864320)
    srd(e, SRD_B, P_OUT, 5242880)
    e(f'''v_lshlrev_b32 v{A16}, 4, v0
          s_mul_i32 s6, s{sG}, 20
          s_add_u32 s6, s6, s{sI}
          s_lshl_b32 s7, s{S_W}, 11
          s_add_u32 s7, s7, {hex(OPX)}
          s_lshl_b32 s{sXO}, s6, 13
          s_add_u32 s{sXO}, s{sXO}, s7
          s_xor_b32 s{sXI}, s{sXO}, 0x2000''')
    for r in range(4):
        e(f'v_mov_b32 v{TMP+r}, -1')
    e(f'''buffer_store_dwordx4 {vr(TMP,4)}, v{A16}, {WS}, s{sXO} offen
          buffer_store_dwordx4 {vr(TMP,4)}, v{A16}, {WS}, s{sXO} offen offset:1024
          s_waitcnt vmcnt(0)
          s_barrier''')
    arrive(e, TMP, TMP + 1)
    e(f'''s_and_b32 s6, s{sI}, 1
          s_lshl_b32 s{sH0}, s6, 2
          s_add_u32 s{sH0}, s{sH0}, s{S_W}
          s_lshl_b32 s{sH0}, s{sH0}, 2
          s_mul_i32 s7, s{sH0}, {HS}
          s_lshl_b32 s{sT}, s6, 10
          s_add_u32 s7, s7, s{sT}
          v_add_u32 v{OA}, s7, v{A16}
          v_xor_b32 v{OA+1}, 0x400, v{OA}
          v_and_b32 v20, 15, v0
          v_lshrrev_b32 v21, 4, v0
          s_lshl_b32 s{sT}, s6, 4
          v_add_u32 v22, s{sT}, v20
          v_mul_u32_u24 v22, 2560, v22
          v_lshl_add_u32 v22, v21, 3, v22
          s_lshr_b32 s{sT}, s{sI}, 1
          s_lshl_b32 s{sT}, s{sT}, 7
          s_lshl_b32 s7, s{S_W}, 5
          s_add_u32 s7, s7, s{sT}
          v_add_u32 v{OUTA}, s7, v22
          s_mul_i32 s7, s{sH0}, {192*1280}
          s_add_u32 s7, s7, s{sT}
          v_lshrrev_b32 v22, 3, v0
          v_mul_u32_u24 v23, 1280, v22
          v_and_b32 v22, 6, v22
          v_and_b32 v24, 7, v0
          v_xor_b32 v22, v22, v24
          v_lshl_add_u32 v23, v22, 4, v23
          v_add_u32 v{WSRC}, s7, v23
          s_mul_i32 s{sRB}, s{S_W}, 40960
          v_lshrrev_b32 v22, 2, v0
          v_lshlrev_b32 v23, 7, v22
          v_and_b32 v24, 3, v0
          v_lshl_add_u32 v23, v24, 3, v23
          v_add_u32 v23, s{sRB}, v23
          v_bfe_u32 v22, v0, 3, 2''')
    for ct in range(4):
        e(f'''v_xor_b32 v24, {ct}, v22
              v_lshl_add_u32 v{TR+ct}, v24, 5, v23''')
    e(f'''v_min_u32 v22, 3, v0
          s_lshl_b32 s6, s{sG}, 5
          s_add_u32 s6, s6, s{sH0}
          s_lshl_b32 s6, s6, 2
          s_add_u32 s6, s6, {hex(AFLAGS)}
          v_lshl_add_u32 v{FLA}, v22, 2, s6
          s_lshl_b32 s6, s{S_W}, 13
          v_add_u32 v{LW}, s6, v{A16}
          s_lshl_b32 s6, s{S_W}, 11
          v_add_u32 v{LR}, s6, v{A16}
          s_mov_b32 s{sS}, s{sG}
          s_mul_i32 s{sSEG}, s{sG}, {SEG}
          s_add_u32 s{sSEG}, s{sSEG}, {hex(OF)}
          s_mul_i32 s{sOUT}, s{sG}, {32*2560}
          s_mov_b32 s{sIT}, 0''')
    start_wait(e, TMP)
    pol = o.get('wpol', '')

    def issue(ks):
        for sl in range(4):
            e(f'''s_mov_b32 s{sT}, {(32*ks + 8*sl)*1280}
                  s_add_u32 m0, s{sRB}, {(ks % 10)*4096 + sl*1024}
                  buffer_load_dwordx4 v{WSRC}, {sr(SRD_A,4)}, s{sT} offen lds {pol}''', tag=('w', ks))
    for ks in range(10):
        issue(ks)
    for ks in range(24):
        e.wait_vm(('w', ks))
        for ct in range(4):
            for u in range(2):
                e(f'ds_read_b64_tr_b16 {vr(wreg(ks, ct) + 2*u, 2)}, v{TR+ct} offset:{(ks % 10)*4096 + u*2048}')
        if ks + 10 < 24:
            e('s_waitcnt lgkmcnt(0)')
            issue(ks + 10)
    top, ok, xl, xok = (e.newlabel(x) for x in ('L_o', 'L_ook', 'L_ox', 'L_oxo'))
    e(f's_waitcnt lgkmcnt(0)\ns_barrier')
    e.label(top)
    e(f'''buffer_load_dword v{TMP}, v{FLA}, {WS}, 0 offen sc1
          s_waitcnt vmcnt(0)
          v_cmp_ge_u32 vcc, s{sS}, v{TMP}
          s_cbranch_vccz {ok}
          s_sleep 1''')
    guard(e, top)
    e.label(ok)

    def load(i):
        ks, tt = i >> 1, i & 1
        hd, k = divmod(ks, 6)
        if i % 4 == 0:
            e(f's_add_u32 s{sT}, s{sSEG}, {hex(hd*HS + (k >> 1)*4096)}')
        e(f'buffer_load_dwordx4 {vr(RG + 4*(i % NR), 4)}, v{OA+tt}, {WS}, s{sT} offen offset:{2048*(k & 1)} sc1')
    for i in range(NR - 1):
        load(i)
    for i in range(48):
        if i + NR - 1 < 48:
            load(i + NR - 1)
        e(f's_waitcnt vmcnt({min(NR - 1, 47 - i)})')
        ks, tt = i >> 1, i & 1
        for ct in range(4):
            acc = ACC + 8*ct + 4*tt
            e(f'v_mfma_f32_16x16x32_bf16 {vr(acc,4)}, {vr(wreg(ks, ct),4)}, {vr(RG + 4*(i % NR),4)}, {vr(acc,4) if ks else 0}')
    e(f'''s_bfe_u32 s{sTAG}, s{sIT}, 0x10001
          s_and_b32 s6, s{sIT}, 1
          s_lshl_b32 s6, s6, 10
          v_add_u32 v{XA}, s6, v{A16}''')
    for t in (0, 2, 4, 6, 1, 3, 5, 7):
        e(f'ds_write_b128 v{LW}, {vr(ACC+4*t,4)} offset:{1024*t}')
    e('s_waitcnt lgkmcnt(0)\ns_barrier')
    for tt in (1, 0):
        for w in range(4):
            e(f'ds_read_b128 {vr(RG + 16*tt + 4*w, 4)}, v{LR} offset:{8192*w + 1024*tt}')
    for tt in (1, 0):
        b = RG + 16*tt
        e(f's_waitcnt lgkmcnt({4*tt})')
        for x, y in ((0, 4), (2, 6), (8, 12), (10, 14), (0, 8), (2, 10)):
            e(f'v_pk_add_f32 {vr(b+x,2)}, {vr(b+x,2)}, {vr(b+y,2)}')
        if tt:
            e(f'''v_and_or_b32 v{b}, v{b}, -2, s{sTAG}
                  buffer_store_dwordx4 {vr(b,4)}, v{XA}, {WS}, s{sXO} offen''')
    e(f'''v_xor_b32 v{LW}, 0x8000, v{LW}
          v_xor_b32 v{LR}, 0x8000, v{LR}''')
    e.label(xl)
    e(f'''buffer_load_dwordx4 {vr(TMP,4)}, v{XA}, {WS}, s{sXI} offen sc1
          s_waitcnt vmcnt(0)
          v_and_b32 v20, 1, v{TMP}
          v_cmp_ne_u32 vcc, s{sTAG}, v20
          s_cbranch_vccz {xok}''')
    guard(e, xl)
    e.label(xok)
    e(f'''v_pk_add_f32 {vr(RG,2)}, {vr(RG,2)}, {vr(TMP,2)}
          v_pk_add_f32 {vr(RG+2,2)}, {vr(RG+2,2)}, {vr(TMP+2,2)}
          v_cvt_pk_bf16_f32 v20, v{RG}, v{RG+1}
          v_cvt_pk_bf16_f32 v21, v{RG+2}, v{RG+3}
          buffer_store_dwordx2 v[20:21], v{OUTA}, {sr(SRD_B,4)}, s{sOUT} offen
          s_add_u32 s{sOUT}, s{sOUT}, {64*2560}
          s_add_u32 s{sSEG}, s{sSEG}, {2*SEG}
          s_add_u32 s{sIT}, s{sIT}, 1
          s_add_u32 s{sS}, s{sS}, 2
          s_cmp_lt_u32 s{sS}, 64
          s_cbranch_scc1 {top}
          s_endpgm''')
```

```python
from common import *
import proj, attn, op, brole


def dispatch(e, o, roles):
    tgt = lambda r: 'L_' + r if r in roles else 'L_idle'
    lo, l1, l2, l3 = (e.newlabel('L_d') for _ in range(4))
    e(f'''s_cmp_lt_u32 s{S_XCC}, 6
          s_cbranch_scc1 {lo}
          s_sub_u32 s60, s{S_XCC}, 6
          s_mov_b32 s61, s{S_TK}
          s_cmp_ge_u32 s{S_TK}, 20
          s_cbranch_scc1 {l1}
          s_branch {tgt('op')}''')
    e.label(l1)
    e(f'''s_mul_i32 s60, s60, 12
          s_add_u32 s60, s60, s{S_TK}
          s_add_u32 s60, s60, 28
          s_branch {tgt('proj')}''')
    e.label(lo)
    e(f'''s_sub_u32 s60, s{S_XCC}, 3
          s_lshl_b32 s60, s60, 4
          s_add_u32 s60, s60, s{S_TK}
          s_cmp_ge_u32 s{S_TK}, 16
          s_cbranch_scc1 {l2}
          s_branch {tgt('proj')}''')
    e.label(l2)
    e(f'''s_sub_u32 s61, s60, 16
          s_mul_i32 s60, s61, 171
          s_lshr_b32 s60, s60, 9
          s_mul_i32 s6, s60, 3
          s_cmp_lg_u32 s6, s61
          s_cbranch_scc1 {l3}
          s_branch {tgt('attn')}''')
    e.label(l3)
    e(f'''s_sub_u32 s60, s61, s60
          s_sub_u32 s60, s60, 1
          s_branch {tgt('b')}''')


def bodies(e, o, roles):
    for name, fn in (('proj', proj.proj), ('attn', attn.attn), ('op', op.op), ('b', brole.brole)):
        if name in roles:
            e.vmq = []
            fn(e, o)
```

```python
from common import *

sPI = 60
sMT, sSL, sT, sT2, sRB, sS, sXW, sSX, sOUT, sXR = 61, 62, 63, 64, 65, 66, 67, 68, 69, 70
RING = 65536
XBUF = 40960
WS0, WS1, TR, XS, XR, OA, FA, XRC = 1, 2, 4, 8, 10, 11, 12, 13
ACC, XF, OUT = 16, 48, 80


def wreg(ks, t):
    i = 16 * ks + 4 * t
    return 256 + i if i < 256 else 192 + i - 256


def x_dma(e, s_off, s_dst):
    for i in range(5):
        for tt in range(2):
            e(f'''s_add_u32 m0, s{s_dst}, {(2*i + tt)*1024 - 64*i}
                  buffer_load_dwordx4 v{XS+tt}, {sr(SRD_B,4)}, s{s_off} offen offset:{64*i} lds''', tag='x')


def loop(e, isv, o):
    top = e.newlabel('L_p')
    e.raw('.p2align 6')
    e.label('L_projv' if isv else 'L_projk')
    e.label(top)
    e('s_waitcnt vmcnt(20)\ns_barrier')
    e(f'v_add_u32 v{XRC}, s{sXR}, v{XR}')

    def rd(ks):
        for tt in range(2):
            e(f'ds_read_b128 {vr(XF + 8*(ks % 4) + 4*tt, 4)}, v{XRC} offset:{(2*ks + tt)*1024}')
    rd(0)
    rd(1)
    dm = []
    for i in range(5):
        for tt in range(2):
            dm.append(f'''s_add_u32 m0, s{sXW}, {(2*i + tt)*1024 - 64*i}
                          buffer_load_dwordx4 v{XS+tt}, {sr(SRD_B,4)}, s{sSX} offen offset:{64*i} lds''')
    for ks in range(20):
        if ks + 2 < 20:
            rd(ks + 2)
        e(f's_waitcnt lgkmcnt({min(4, 2*(19-ks))})')
        for tt in range(2):
            for t in range(4):
                acc = ACC + 8*t + 4*tt
                x, w = vr(XF + 8*(ks % 4) + 4*tt, 4), vr(wreg(ks, t), 4)
                a, b = (x, w) if isv else (w, x)
                e(f'v_mfma_f32_16x16x32_bf16 {vr(acc,4)}, {a}, {b}, {vr(acc,4) if ks else 0}')
            if tt == 0 and dm:
                e(dm.pop(0))
        if ks == 12:
            e(f'''v_mov_b32 v{OUT}, s{sS}
                  s_waitcnt vmcnt(10)
                  s_mov_b64 exec, 1
                  buffer_store_dword v{OUT}, v{FA}, {WS}, 0 offen sc1
                  s_mov_b64 exec, -1''')
    e(f'''s_add_u32 s{sS}, s{sS}, 1
          s_add_u32 s{sSX}, s{sSX}, {XBUF}
          s_add_u32 s{sXR}, s{sXR}, {XBUF}
          s_cmp_eq_u32 s{sXR}, {3*XBUF}
          s_cselect_b32 s{sXR}, 0, s{sXR}
          s_add_u32 s{sXW}, s{sXW}, {XBUF}
          s_sub_u32 s{sT}, s{sXW}, {3*XBUF}
          s_cmp_ge_u32 s{sXW}, {3*XBUF}
          s_cselect_b32 s{sXW}, s{sT}, s{sXW}''')
    for f in range(4):
        if isv:
            src = [ACC + 8*f, ACC + 8*f + 4]
        else:
            src = [ACC + 16*(f >> 1) + 4*(f & 1), ACC + 16*(f >> 1) + 8 + 4*(f & 1)]
        for h in range(2):
            e(f'''v_cvt_pk_bf16_f32 v{OUT+4*f+2*h}, v{src[h]}, v{src[h]+1}
                  v_cvt_pk_bf16_f32 v{OUT+4*f+2*h+1}, v{src[h]+2}, v{src[h]+3}''')
        e(f'buffer_store_dwordx4 {vr(OUT+4*f,4)}, v{OA}, {WS}, s{sOUT} offen offset:{1024*f} sc1')
    e(f'''s_add_u32 s{sOUT}, s{sOUT}, {SEG}
          s_cmp_lt_u32 s{sS}, 64
          s_cbranch_scc1 {top}
          v_mov_b32 v{ACC}, 64
          s_waitcnt vmcnt(0)
          s_mov_b64 exec, 1
          buffer_store_dword v{ACC}, v{FA}, {WS}, 0 offen sc1
          s_endpgm''')


def proj(e, o):
    e.comment('---- projections')
    e.label('L_proj')
    lk, lv, lj = e.newlabel('L_pk'), e.newlabel('L_pv'), e.newlabel('L_pj')
    e(f'''s_cmp_lt_u32 s{sPI}, 24
          s_cbranch_scc1 {lk}
          s_cmp_lt_u32 s{sPI}, 48
          s_cbranch_scc1 {lv}''')
    for mt, lab, ptr, dst in ((2, None, P_WQ, QF), (1, lv, P_WV, VF), (0, lk, P_WK, KF)):
        if lab:
            e.label(lab)
        e(f'''s_mov_b32 s{sMT}, {mt}
              s_mov_b32 s{sOUT}, {hex(dst)}
              s_sub_u32 s{sSL}, s{sPI}, {24*mt}''')
        srd(e, SRD_A, ptr, 7864320)
        if mt:
            e(f's_branch {lj}')
    e.label(lj)
    srd(e, SRD_B, P_X, 2621440)
    e(f'''s_lshl_b32 s{sSL}, s{sSL}, 2
          s_add_u32 s{sSL}, s{sSL}, s{S_W}
          s_mul_i32 s{sT}, s{sSL}, 171
          s_lshr_b32 s{sT}, s{sT}, 9
          s_mul_i32 s{sT2}, s{sT}, 3
          s_sub_u32 s{sT2}, s{sSL}, s{sT2}
          s_mul_i32 s6, s{sT}, {HS}
          s_lshl_b32 s7, s{sT2}, 12
          s_add_u32 s6, s6, s7
          v_lshl_add_u32 v{OA}, v0, 4, s6
          s_lshl_b32 s6, s{sT}, 5
          s_mul_i32 s7, s{sMT}, 3
          s_add_u32 s6, s6, s7
          s_add_u32 s6, s6, s{sT2}
          s_lshl_b32 s6, s6, 2
          s_add_u32 s6, s6, {hex(FLAGS)}
          v_mov_b32 v{FA}, s6
          v_mov_b32 v20, 0
          s_mov_b64 exec, 1
          buffer_store_dword v20, v{FA}, {WS}, 0 offen sc1
          s_mov_b64 exec, -1''', tag='init')
    e(f'''v_lshrrev_b32 v20, 3, v0
          v_mul_u32_u24 v21, 12288, v20
          s_lshl_b32 s6, s{sSL}, 7
          v_add_u32 v21, s6, v21
          v_and_b32 v22, 7, v0
          v_and_b32 v23, 2, v20
          v_xor_b32 v22, v22, v23
          v_lshl_add_u32 v{WS0}, v22, 4, v21
          v_xor_b32 v22, 4, v22
          v_lshl_add_u32 v{WS1}, v22, 4, v21
          v_add_u32 v{WS1}, {8*12288}, v{WS1}
          s_mul_i32 s{sRB}, s{S_W}, 24576
          s_add_u32 s{sRB}, s{sRB}, {RING}
          v_lshrrev_b32 v20, 4, v0
          v_bfe_u32 v21, v0, 2, 2
          v_and_b32 v22, 3, v0
          v_lshlrev_b32 v23, 10, v20
          v_lshl_add_u32 v23, v21, 7, v23
          v_lshl_add_u32 v23, v22, 3, v23
          v_add_u32 v23, s{sRB}, v23
          v_and_b32 v24, 1, v20
          v_lshrrev_b32 v25, 1, v21
          v_lshl_add_u32 v24, v24, 1, v25''')
    for t in range(4):
        e(f'''v_xor_b32 v25, {t}, v24
              v_lshl_add_u32 v{TR+t}, v25, 5, v23''')
    e(f'''v_lshrrev_b32 v23, 2, v0
          v_mul_u32_u24 v23, 1280, v23
          v_sub_u32 v24, 0, v20
          v_and_b32 v24, 3, v24
          v_xor_b32 v24, v24, v22
          v_lshl_add_u32 v23, v24, 4, v23
          s_mul_i32 s6, s{S_W}, 320
          v_add_u32 v{XS}, s6, v23
          v_add_u32 v{XS+1}, {16*1280}, v{XS}
          v_sub_u32 v24, 0, v21
          v_and_b32 v24, 3, v24
          v_xor_b32 v24, v24, v20
          v_and_b32 v23, 15, v0
          v_lshlrev_b32 v23, 6, v23
          v_lshl_add_u32 v{XR}, v24, 4, v23
          s_mul_i32 s{sXW}, s{S_W}, 10240
          s_mov_b32 s{sSX}, 0
          s_mov_b32 s{sS}, 0
          s_mov_b32 s{sXR}, 0
          s_barrier''')
    pol = o.get('wpol', '')

    def issue(ks):
        for sl in range(4):
            e(f'''s_mov_b32 s{sT}, {(32*ks + 16*(sl >> 1))*12288}
                  s_add_u32 m0, s{sRB}, {(ks % 6)*4096 + sl*1024}
                  buffer_load_dwordx4 v{WS0 + (sl & 1)}, {sr(SRD_A,4)}, s{sT} offen lds {pol}''', tag=('w', ks))
    for ks in range(6):
        issue(ks)
    x_dma(e, sSX, sXW)
    e.wait_vm('init')
    e('s_barrier')
    arrive(e, 20, 21)
    for ks in range(20):
        e.wait_vm(('w', ks))
        for t in range(4):
            for u in range(2):
                e(f'ds_read_b64_tr_b16 {vr(wreg(ks, t) + 2*u, 2)}, v{TR+t} offset:{(ks % 6)*4096 + u*512}')
        if ks + 6 < 20:
            e('s_waitcnt lgkmcnt(0)')
            issue(ks + 6)
    e(f'''s_waitcnt vmcnt(0) lgkmcnt(0)
          s_barrier
          s_add_u32 s{sXW}, s{sXW}, {XBUF}
          s_add_u32 s{sSX}, s{sSX}, {XBUF}''')
    x_dma(e, sSX, sXW)
    e(f'''s_add_u32 s{sXW}, s{sXW}, {XBUF}
          s_add_u32 s{sSX}, s{sSX}, {XBUF}
          s_cmp_eq_u32 s{sMT}, 1
          s_cbranch_scc1 L_projv
          s_branch L_projk''')
    loop(e, False, o)
    loop(e, True, o)
```

```python
import sys
from common import *
import chain

HEAD = open('cdna_kernels/%s.s.ref' % NAME).read().split('; Override launch')[0]


def build(o):
    roles = o.get('roles', 'chain,proj,attn,op,b').split(',')
    e = Em()
    prologue(e)
    e(f'''s_cmp_lt_u32 s{S_XCC}, 3
          s_cbranch_scc1 L_chain
          s_cmp_lt_u32 s{S_XCC}, 6
          s_cbranch_scc1 L_noprobe
          s_cmp_ge_u32 s{S_TK}, 17
          s_cbranch_scc1 L_noprobe
          s_lshl_b32 s61, s{S_TK}, 1
          s_and_b32 s6, s{S_XCC}, 1
          s_add_u32 s61, s61, s6''')
    probe(e, 61)
    e.label('L_noprobe')
    try:
        import others
        others.dispatch(e, o, roles)
    except ImportError:
        pass
    e.label('L_idle')
    arrive(e, 4, 5)
    e.label('L_end')
    e('s_endpgm')
    e.label('L_chain')
    if 'chain' in roles:
        chain.chain(e, o)
    else:
        e('s_branch L_idle')
    try:
        import others
        others.bodies(e, o, roles)
    except ImportError:
        pass
    bad = e.check_branches()
    for b in bad:
        print('HAZARD across branch:', b, file=sys.stderr)
    assert not bad
    k = NAME + '_kernel'
    txt = HEAD + f'''; One persistent workgroup per CU; each workgroup picks a role from the die it runs on and a per-die ticket.
; @launch grid=(256,1,1) block=(256,1,1) lds={LDS_BYTES}
.amdgcn_target "amdgcn-amd-amdhsa--gfx950"
.text
.globl {k}
.p2align 8
.type {k},@function
{k}:
''' + e.text() + f'''.section .rodata,"a"
.p2align 6
.amdhsa_kernel {k}
  .amdhsa_next_free_vgpr 512
  .amdhsa_next_free_sgpr 102
  .amdhsa_accum_offset 256
  .amdhsa_group_segment_fixed_size 0
  .amdhsa_kernarg_size 104
  .amdhsa_user_sgpr_count 2
  .amdhsa_user_sgpr_kernarg_segment_ptr 1
  .amdhsa_system_sgpr_workgroup_id_x 1
  .amdhsa_float_denorm_mode_32 3
.end_amdhsa_kernel
'''
    print('instructions:', e.ninstr(), 'pad states:', e.padded, file=sys.stderr)
    return txt


if __name__ == '__main__':
    o = {}
    for a in sys.argv[2:]:
        k, v = a.split('=', 1)
        try:
            v = int(v, 0)
        except ValueError:
            pass
        o[k] = v
    if o.get('stamps'):
        o['stamps'] = STAMPS
    open(sys.argv[1], 'w').write(build(o) + ('; options: ' + ' '.join(sys.argv[2:])[:150] + '\n' if o else ''))
```
